```python
import torch

def _softmax(x, axis=-1):
    return torch.softmax(x, dim=axis)
def _gelu(x):
    return torch.nn.functional.gelu(x, approximate="tanh")
def _silu(x):
    return torch.nn.functional.silu(x)
def _sigmoid(x):
    return torch.sigmoid(x)
def _layernorm(x, axis=-1, eps=1e-5):
    m = x.mean(dim=axis, keepdim=True)
    v = x.var(dim=axis, keepdim=True, unbiased=False)
    return (x - m) / torch.sqrt(v + eps)
def _scatter_add(tgt, idx, src, axis=0):
    return tgt.clone().index_add_(axis, idx, src)
def _segment_sum(src, seg, n):
    out = torch.zeros((n,) + src.shape[1:], dtype=src.dtype)
    return out.index_add_(0, seg, src)
def _pad(x, pw):
    flat = tuple(v for pair in reversed(pw) for v in pair)
    return torch.nn.functional.pad(x, flat)

kernel_name = 'sequential_preLN__compressed_kv_cla__mixer_token_mlp__prompt'

def setup_inputs():

    _w = (lambda a: (lambda t: t.to(torch.bfloat16) if t.is_floating_point() else t)(torch.as_tensor(a)))
    def _A_setup():
        B, H, Sq, Sk, D, M = 1, 16, 2048, 2048, 256, 448
        Dc = 4 * D
        return {
            "x": _w((lambda *s: torch.randn(*s, dtype=torch.bfloat16) * 0.05)(B, Sq, M)),
            "c_kv": _w((lambda *s: torch.randn(*s, dtype=torch.bfloat16) * 0.2)(B, Sk, Dc)),
            "w_q": _w((lambda *s: torch.randn(*s, dtype=torch.bfloat16) * 3.2)(M, H, D) * (M ** -0.5)),
            "w_uk": _w((lambda *s: torch.randn(*s, dtype=torch.bfloat16) * 6.4)(Dc, H, D) * (Dc ** -0.5)),
            "w_uv": _w((lambda *s: torch.randn(*s, dtype=torch.bfloat16) * 0.2)(Dc, H, D) * (Dc ** -0.5)),
            "w_o": _w((lambda *s: torch.randn(*s, dtype=torch.bfloat16) * 0.2)(H, D, M) * ((H * D) ** -0.5)),
        }
    _A_in = _A_setup()

    def _B_setup():
        B, S, D, F = 1, 2048, 448, 1792
        return {
            "x": _w((lambda *s: torch.randn(*s, dtype=torch.bfloat16) * 0.05)(B, S, D)),
            "w1": _w((lambda *s: torch.randn(*s, dtype=torch.bfloat16) * 0.4)(S, F) * (S ** -0.5)),
            "b1": _w((lambda *s: torch.randn(*s, dtype=torch.bfloat16) * 3.2)(F) * 0.02),
            "w2": _w((lambda *s: torch.randn(*s, dtype=torch.bfloat16) * 0.2)(F, S) * (F ** -0.5)),
            "b2": _w((lambda *s: torch.randn(*s, dtype=torch.bfloat16) * 0.8)(S) * 0.02),
        }
    _B_in = _B_setup()

    return {
        "A_x": _A_in["x"],
        "A_c_kv": _A_in["c_kv"],
        "A_w_q": _A_in["w_q"],
        "A_w_uk": _A_in["w_uk"],
        "A_w_uv": _A_in["w_uv"],
        "A_w_o": _A_in["w_o"],
        "B_x": _B_in["x"],
        "B_w1": _B_in["w1"],
        "B_b1": _B_in["b1"],
        "B_w2": _B_in["w2"],
        "B_b2": _B_in["b2"],
    }

def reference(A_x, A_c_kv, A_w_q, A_w_uk, A_w_uv, A_w_o, B_x, B_w1, B_b1, B_w2, B_b2):
    def _A_ref(x, c_kv, w_q, w_uk, w_uv, w_o):
        B, Sq, M = x.shape[0], x.shape[1], x.shape[2]
        Sk = c_kv.shape[1]
        H, D = w_q.shape[1], w_q.shape[2]
        q = torch.einsum("bqm,mhd->bhqd", x, w_q)
        k = torch.einsum("bkc,chd->bhkd", c_kv, w_uk)
        v = torch.einsum("bkc,chd->bhkd", c_kv, w_uv)
        scores = torch.einsum("bhqd,bhkd->bhqk", q, k) * (D ** -0.5)
        off = Sk - Sq
        qi = torch.arange(Sq)[:, None]
        kj = torch.arange(Sk)[None, :]
        cmask = kj <= (qi + off)
        scores = torch.where(cmask[None, None], scores, -1e9)
        p = _softmax(scores, axis=-1)
        ctx = torch.einsum("bhqk,bhkd->bhqd", p, v)
        return torch.einsum("bhqd,hdm->bqm", ctx, w_o)

    def _B_ref(x, w1, b1, w2, b2):
        B, S, D = x.shape
        h = _layernorm(x, axis=-1)
        u = torch.einsum("bsd,sf->bdf", h, w1) + b1
        u = _gelu(u)
        y = torch.einsum("bdf,fs->bds", u, w2) + b2
        return (lambda x, *d: x.permute(*d))(y, 0, 2, 1)

    x = A_x
    h = x + _A_ref(_layernorm(x, axis=-1), A_c_kv, A_w_q, A_w_uk, A_w_uv, A_w_o)
    h2 = h + _B_ref(_layernorm(h, axis=-1), B_w1, B_b1, B_w2, B_b2)
    return h2
```

```python
import sys

MF = "v_mfma_f32_16x16x32_bf16"

def vr(b, n=1, p="v"):
    return f"{p}{b}" if n == 1 else f"{p}[{b}:{b+n-1}]"
def ar(b, n=1): return vr(b, n, "a")
def sr(b, n=1): return vr(b, n, "s")

class Asm:
    def __init__(self):
        self.L = []
        self.uid = 0
    def __call__(self, s=""):
        for l in s.split("\n"):
            l = l.strip()
            if l: self.L.append(l)
    def label(self, base):
        self.uid += 1
        return f"{base}_{self.uid}"
    def resolve(self):
        import re
        for i, l in enumerate(self.L):
            m = re.search(r"vmcnt\(@(\w+)\+(\d+)\)", l)
            if not m: continue
            cnt = int(m.group(2)); j = i - 1
            while self.L[j] != ";@mark " + m.group(1):
                if self.L[j].startswith("buffer_"): cnt += 1
                j -= 1
                assert j >= 0, l
            self.L[i] = l.replace(m.group(0), f"vmcnt({min(cnt, 63)})")
        self.L = [l for l in self.L if not l.startswith(";@mark")]
    def text(self):
        self.resolve()
        out = []
        for l in self.L:
            if l.endswith(":") or l.startswith(".") or l.startswith(";"):
                out.append(l)
            else:
                out.append("  " + l)
        return "\n".join(out) + "\n"

class It:
    def __init__(self, text, kind, lo=0, rid=None, gapafter=0, hi=None, deps=None):
        self.text, self.kind, self.lo, self.rid, self.gapafter = text, kind, lo, rid, gapafter
        self.hi = hi
        self.deps = list(deps) if deps else []
        self.pos = None

class Free(list):
    pass

class Gap:
    def __init__(self):
        self.s, self.d, self.v = [], [], []
        self.nv = 0
        self.alone = False
        self.novalu = False
        self.onlym = False
    def fits(self, k):
        if self.alone: return False
        if self.onlym and k != "m": return False
        ns = len(self.s)
        if k == "m": return ns == 0 and self.nv == 0
        if k == "s": return ns + self.nv < 3
        if k == "d": return self.nv < 2 and ns + self.nv < 3
        if k == "v": return (not self.novalu) and self.nv < 2 and ns + self.nv < 3
        if k == "x": return (not self.novalu) and self.nv == 0 and ns <= 1
        raise ValueError(k)
    def add(self, it):
        k = it.kind
        if k == "m": self.alone = True; self.v.append(it)
        elif k == "s": self.s.append(it)
        elif k == "d": self.d.append(it); self.nv += 1
        elif k == "v": self.v.append(it); self.nv += 1
        elif k == "x": self.v.append(it); self.nv += 2

def sched(A, mf, fixed, streams, carry=(), lat=7, name="", pairnop=True, reserve=(), overnop=0):
    n = len(mf)
    G = [Gap() for _ in range(n)]
    for g in reserve: G[g].onlym = True
    for g, it in fixed:
        if it.kind == "b":
            G[g].s.append(it); G[g].novalu = True
            if g > 0: G[g-1].novalu = True
            continue
        if not G[g].fits(it.kind):
            print(f"[sched {name}] fixed item does not fit gap {g}: {it.text}", file=sys.stderr)
        G[g].add(it)
    reads = list(carry)
    for g in range(n):
        for it in G[g].d:
            reads.append((it.rid, g))
    idx = {}
    for i, (rid, g) in enumerate(reads):
        idx.setdefault(rid, []).append(i)
    done = -1
    pre = []
    for m in range(n):
        need = -1
        for rid in mf[m][1]:
            cand = [i for i in idx.get(rid, []) if reads[i][1] < m]
            assert cand, (name, m, rid)
            need = max(need, max(cand))
        if need <= done: continue
        g = m - 1
        while g >= 0 and not G[g].fits("s"): g -= 1
        issued = sum(1 for (_, gg) in reads if gg < g) if g >= 0 else len(carry)
        assert need < issued, (name, "read issued too late", m, mf[m], reads[need], g)
        cover = need
        while cover + 1 < issued and reads[cover+1][1] <= g - lat: cover += 1
        cnt = min(15, issued - cover - 1)
        cover = issued - cnt - 1
        w = It(f"s_waitcnt lgkmcnt({cnt})", "s")
        if g >= 0: G[g].s.insert(0, w)
        else: pre.append(w)
        if g - reads[need][1] < 4 and g >= 0:
            print(f"[sched {name}] short lds lead at mfma {m}: {g - reads[need][1]}", file=sys.stderr)
        done = cover
    pool = []
    for st in streams:
        free = isinstance(st, Free)
        prev = None
        for it in st:
            if prev is not None and not free: it.deps.append((prev, prev.gapafter))
            prev = it
            pool.append(it)
    for g in range(n):
        progress = True
        while progress:
            progress = False
            for it in pool:
                if it.pos is not None or it.lo > g: continue
                if any(d.pos is None or d.pos + k > g for d, k in it.deps): continue
                if not G[g].fits(it.kind): continue
                if it.kind == "s" and G[g].s and not (it.hi is not None and it.hi <= g): continue
                if it.kind == "s" and any(d.pos == g and d.kind != "s" for d, k in it.deps): continue
                G[g].add(it); it.pos = g; progress = True
                break
    over = [it for it in pool if it.pos is None]
    for it in pool:
        if it.hi is not None:
            assert it.pos is not None and it.pos <= it.hi, (name, "deadline missed", it.text, it.pos, it.hi)
    for w in pre: A(w.text)
    for m in range(n):
        A(mf[m][0])
        g = G[m]
        if pairnop and len(g.d) == 2 and not g.s: A("s_nop 0")
        for it in g.s + g.d + g.v: A(it.text)
    if over:
        print(f"[sched {name}] {len(over)} items overflow", file=sys.stderr)
        if overnop: A(f"s_nop {overnop}")
        left = list(over)
        while left:
            for it in left:
                if all(d.pos is not None for d, k in it.deps):
                    A(it.text); it.pos = n; left.remove(it)
                    if it.kind == "x" or it.gapafter: A("s_nop 0")
                    break
    return [(rid, g - n) for (rid, g) in reads[done+1:]]

def kernel_begin(A, name):
    A(".text")
    A(f".globl {name}")
    A(".p2align 8")
    A(f".type {name},@function")
    A(f"{name}:")

def kernel_end(A, name, nvgpr, accoff, nsgpr=96):
    A("s_endpgm")
    A('.section .rodata,"a"')
    A(".p2align 6")
    A(f".amdhsa_kernel {name}")
    A(f".amdhsa_next_free_vgpr {nvgpr}")
    A(f".amdhsa_next_free_sgpr {nsgpr}")
    A(f".amdhsa_accum_offset {accoff}")
    A(".amdhsa_group_segment_fixed_size 0")
    A(".amdhsa_kernarg_size 112")
    A(".amdhsa_user_sgpr_count 2")
    A(".amdhsa_user_sgpr_kernarg_segment_ptr 1")
    A(".amdhsa_system_sgpr_workgroup_id_x 1")
    A(".end_amdhsa_kernel")

def srd(A, d, ptr, nbytes):
    A(f"s_mov_b32 s{d}, s{ptr}")
    A(f"s_mov_b32 s{d+1}, s{ptr+1}")
    A(f"s_mov_b32 s{d+2}, {nbytes}")
    A(f"s_mov_b32 s{d+3}, 0x20000")

def allsum16(A, regs):
    for pat in ("quad_perm:[1,0,3,2]", "quad_perm:[2,3,0,1]", "row_half_mirror", "row_mirror"):
        if len(regs) < 3: A("s_nop 1")
        for r in regs:
            A(f"v_add_f32_dpp v{r}, v{r}, v{r} {pat} row_mask:0xf bank_mask:0xf")

def crossrow(A, op, regs, tmps):
    for sw in ("v_permlane16_swap_b32", "v_permlane32_swap_b32"):
        for r, t in zip(regs, tmps): A(f"v_mov_b32 v{t}, v{r}")
        A("s_nop 1")
        for r, t in zip(regs, tmps): A(f"{sw} v{r}, v{t}")
        A("s_nop 0")
        for r, t in zip(regs, tmps): A(f"{op} v{r}, v{r}, v{t}")
```

```python
import sys, math, struct
from asmlib import *

WS_KV   = 0x0000000
WS_XN   = 0x2000000
WS_PO   = 0x2200000
WS_LSE  = 0x2A00000
WS_FLAG = 0x2A80000
WS_OP   = 0x2B00000
WS_H    = 0x4700000
WS_HN   = 0x4900000
WS_U    = 0x4B00000
WS_STAMP= 0x5000000
WS_SIZE = 0x10000000
KA = dict(x=0, ckv=8, wq=16, wuk=24, wuv=32, wo=40, bx=48, w1=56, b1=64, w2=72, b2=80, out=88, dbg=96, ws=104)

def f2u(f): return struct.unpack("<I", struct.pack("<f", f))[0]
QSCALE = math.log2(math.e) / 16.0

OPT = dict(stamp=False, st_kv="sc1", st_op="sc1", nh0=13, kernels="kv,attn,red,m1,m2")

def stamp(A, kid, slot, ws=12, wave=20, nw=2):
    if not OPT["stamp"]: return
    A("s_memrealtime s[90:91]")
    A("s_memtime s[92:93]")
    A("s_waitcnt lgkmcnt(0)")
    A(f"s_lshl_b32 s94, s2, 2")
    A(f"s_and_b32 s95, s{wave}, 3")
    A(f"s_add_u32 s94, s94, s95")
    A(f"s_lshl_b32 s94, s94, 7")
    A(f"s_add_u32 s94, s94, {WS_STAMP + kid*0x40000 + slot*8}")
    A("v_mov_b32 v2, s90")
    A("v_mov_b32 v3, s92")
    A("s_mov_b64 s[88:89], exec")
    A("s_mov_b64 exec, 1")
    A(f"buffer_store_dwordx2 v[2:3], off, s[{ws}:{ws+3}], s94")
    A("s_mov_b64 exec, s[88:89]")
    A("s_nop 1")

def gen_kv(A):
    name = "kvproj_kernel"
    kernel_begin(A, name)
    A("s_cmp_ge_u32 s2, 256")
    A("s_cbranch_scc1 KV_END")
    A("s_load_dwordx4 s[28:31], s[0:1], 0")
    A("s_load_dwordx4 s[32:35], s[0:1], 24")
    A(f"s_load_dwordx2 s[36:37], s[0:1], {KA['ws']}")
    A("v_lshrrev_b32 v2, 6, v0")
    A("v_and_b32 v1, 63, v0")
    A("v_readfirstlane_b32 s20, v2")
    A("s_and_b32 s21, s2, 7")
    A("s_lshl_b32 s21, s21, 1")
    A("s_bfe_u32 s22, s2, 0x10003")
    A("s_add_u32 s21, s21, s22")
    A("s_bfe_u32 s22, s2, 0x10004")
    A("s_lshr_b32 s23, s2, 5")
    A("s_waitcnt lgkmcnt(0)")
    srd(A, 4, 30, 2048*1024*2)
    A("s_cmp_eq_u32 s22, 0")
    A("s_cselect_b32 s8, s32, s34")
    A("s_cselect_b32 s9, s33, s35")
    A(f"s_mov_b32 s10, {1024*4096*2}")
    A("s_mov_b32 s11, 0x20000")
    srd(A, 12, 36, WS_SIZE)
    srd(A, 16, 28, 2048*448*2)
    stamp(A, 0, 0)
    A("s_lshl_b32 s28, s2, 3")
    A("s_lshl_b32 s29, s20, 1")
    A("s_add_u32 s28, s28, s29")
    A("s_mul_i32 s29, s28, 896")
    A("v_lshrrev_b32 v2, 2, v1")
    A("v_and_b32 v3, 3, v1")
    A("v_lshlrev_b32 v4, 6, v2")
    A("v_lshl_add_u32 v4, v3, 3, v4")
    A("v_cmp_gt_u32 vcc, 56, v1")
    A("v_mov_b32 v5, 0x7fff0000")
    A("s_nop 0")
    A("v_cndmask_b32 v4, v5, v4, vcc")
    A("buffer_load_dwordx2 v[32:33], v4, s[16:19], s29 offen")
    A("buffer_load_dwordx2 v[34:35], v4, s[16:19], s29 offen offset:32")
    A("buffer_load_dwordx2 v[36:37], v4, s[16:19], s29 offen offset:896")
    A("buffer_load_dwordx2 v[38:39], v4, s[16:19], s29 offen offset:928")
    A("s_lshr_b32 s30, s28, 4")
    A("s_mul_i32 s30, s30, 14336")
    A("s_and_b32 s31, s28, 15")
    A("s_lshl_b32 s31, s31, 4")
    A("s_add_u32 s30, s30, s31")
    A(f"s_add_u32 s30, s30, {WS_XN}")
    A("v_lshlrev_b32 v6, 10, v2")
    A("v_lshl_add_u32 v6, v3, 8, v6")
    A("v_cndmask_b32 v6, v5, v6, vcc")
    A("v_lshrrev_b32 v2, 3, v1")
    A("v_lshrrev_b32 v3, 4, v1")
    A("v_and_b32 v4, 7, v1")
    A("s_lshl_b32 s31, s23, 8")
    A("s_lshr_b32 s32, s20, 1")
    A("s_lshl_b32 s32, s32, 7")
    A("s_add_u32 s31, s31, s32")
    A("s_and_b32 s32, s20, 1")
    A("s_lshl_b32 s32, s32, 5")
    A("s_add_u32 s31, s31, s32")
    A("v_add_u32 v2, s31, v2")
    A("v_lshlrev_b32 v2, 11, v2")
    for i in range(4):
        A(f"v_xor_b32 v5, v4, v3")
        if i & 1: A("v_xor_b32 v5, 4, v5")
        A(f"v_lshl_add_u32 v{8+i}, v5, 4, v2")
        if i: A(f"v_add_u32 v{8+i}, {i*(8*2048-1024)}, v{8+i}")
    A("s_lshl_b32 s31, s20, 4")
    A("v_add_u32 v2, s31, v3")
    A("v_lshlrev_b32 v2, 13, v2")
    A("s_lshl_b32 s31, s21, 9")
    A("v_add_u32 v2, s31, v2")
    A("v_and_b32 v4, 1, v1")
    A("v_lshl_add_u32 v2, v4, 4, v2")
    A("v_bfe_u32 v4, v1, 1, 3")
    A("v_xor_b32 v4, v4, v3")
    for i in range(4):
        if i == 2: A("v_xor_b32 v4, 4, v4")
        A("v_lshrrev_b32 v5, 2, v4")
        A("v_lshl_add_u32 v7, v5, 8, v2")
        A("v_and_b32 v5, 3, v4")
        A(f"v_lshl_add_u32 v{12+i}, v5, 5, v7")
        if i: A(f"v_add_u32 v{12+i}, {i*(4*8192-1024)}, v{12+i}")
    A("s_lshl_b32 s27, s20, 12")
    A("s_mov_b32 s24, 0")
    A("s_mov_b32 s25, 0")
    def dma_c(i): return f"buffer_load_dwordx4 v{8+i}, s[4:7], s24 offen offset:{i*1024} lds"
    def dma_w(i): return f"buffer_load_dwordx4 v{12+i}, s[8:11], s25 offen offset:{i*1024} lds"
    def adv_c(par): return f"s_add_u32 s24, s24, {131072 if par == 0 else (128-131072) & 0xffffffff}"
    def adv_w(par): return f"s_add_u32 s25, s25, {128 if par == 0 else 524288-128}"
    for p in range(4):
        A(f"s_add_u32 m0, s27, {p*32768}")
        A("s_nop 0")
        for i in range(4): A(dma_c(i))
        A(f"s_add_u32 m0, s27, {p*32768+16384}")
        A(adv_c(p & 1))
        for i in range(4): A(dma_w(i))
        A(adv_w(p & 1))
    A("v_and_b32 v2, 15, v1")
    A("s_lshr_b32 s31, s20, 1")
    A("s_lshl_b32 s31, s31, 13")
    A("v_lshlrev_b32 v4, 7, v2")
    A("v_add_u32 v4, s31, v4")
    A("v_lshrrev_b32 v5, 1, v2")
    A("v_xor_b32 v5, v5, v3")
    A("v_lshl_add_u32 v16, v5, 4, v4")
    A("v_xor_b32 v17, 64, v16")
    A("v_add_u32 v18, 0x10000, v16")
    A("v_add_u32 v19, 0x10000, v17")
    A("v_bfe_u32 v4, v1, 2, 2")
    A("v_lshl_add_u32 v5, v3, 3, v4")
    A("v_lshlrev_b32 v5, 8, v5")
    A("v_and_b32 v7, 3, v1")
    A("v_lshl_add_u32 v5, v7, 3, v5")
    A("v_add_u32 v5, 16384, v5")
    A("v_and_b32 v7, 1, v3")
    A("v_lshl_add_u32 v4, v7, 2, v4")
    A("s_and_b32 s31, s20, 1")
    A("s_lshl_b32 s31, s31, 2")
    A("v_xor_b32 v4, s31, v4")
    for nt in range(4):
        A(f"v_xor_b32 v7, {nt}, v4")
        A(f"v_lshl_add_u32 v{20+nt}, v7, 5, v5")
        A(f"v_add_u32 v{24+nt}, 0x10000, v{20+nt}")
    A("s_lshl_b32 s31, s21, 21")
    A("s_lshl_b32 s32, s23, 18")
    A("s_add_u32 s31, s31, s32")
    A("s_lshr_b32 s32, s20, 1")
    A("s_lshl_b32 s32, s32, 17")
    A("s_add_u32 s31, s31, s32")
    A("s_and_b32 s32, s20, 1")
    A("s_lshl_b32 s33, s32, 12")
    A("s_lshl_b32 s32, s32, 14")
    A("s_add_u32 s32, s32, 32768")
    A("s_cmp_eq_u32 s22, 0")
    A("s_cselect_b32 s32, s33, s32")
    A("s_add_u32 s31, s31, s32")
    A("v_lshlrev_b32 v28, 4, v1")
    A("v_add_u32 v28, s31, v28")
    A("v_mov_b32 v2, 0")
    A("s_lshl_b32 s31, s2, 7")
    A(f"s_add_u32 s31, s31, {WS_FLAG}")
    A("v_lshlrev_b32 v3, 2, v1")
    A("v_and_b32 v3, 127, v3")
    A("buffer_store_dword v2, v3, s[12:15], s31 offen")
    for r in range(64, 256): A(f"v_mov_b32 v{r}, 0")
    for r in range(64): A(f"v_accvgpr_write_b32 a{r}, 0")
    A("s_waitcnt vmcnt(33)")
    for row in range(2):
        for k in range(4):
            s = 32 + 4*row + k; d = 40 + 8*row + 2*k
            A(f"v_lshlrev_b32 v{d}, 16, v{s}")
            A(f"v_and_b32 v{d+1}, 0xffff0000, v{s}")
    for row in range(2):
        d = 40 + 8*row
        A(f"v_add_f32 v{56+row}, v{d}, v{d+1}")
        A(f"v_mul_f32 v{58+row}, v{d}, v{d}")
        for k in range(1, 8):
            if k > 1: A(f"v_add_f32 v{56+row}, v{56+row}, v{d+k}")
            A(f"v_fmac_f32 v{58+row}, v{d+k}, v{d+k}")
    A("s_nop 1")
    allsum16(A, [56, 57, 58, 59])
    crossrow(A, "v_add_f32", [56, 57, 58, 59], [60, 61, 62, 63])
    A(f"s_mov_b32 s31, {f2u(1.0/448)}")
    for row in range(2):
        A(f"v_mul_f32 v{56+row}, s31, v{56+row}")
        A(f"v_mul_f32 v{58+row}, s31, v{58+row}")
        A(f"v_fma_f32 v{58+row}, -v{56+row}, v{56+row}, v{58+row}")
        A(f"v_max_f32 v{58+row}, 0, v{58+row}")
        A(f"v_add_f32 v{58+row}, {hex(f2u(1e-5))}, v{58+row}")
        A(f"v_rsq_f32 v{58+row}, v{58+row}")
        A("s_nop 0")
        A(f"v_mul_f32 v{58+row}, {hex(f2u(QSCALE))}, v{58+row}")
        d = 40 + 8*row
        for k in range(8):
            A(f"v_sub_f32 v{d+k}, v{d+k}, v{56+row}")
            A(f"v_mul_f32 v{d+k}, v{d+k}, v{58+row}")
        for k in range(4):
            A(f"v_cvt_pk_bf16_f32 v{32+4*row+k}, v{d+2*k}, v{d+2*k+1}")
        A(f"buffer_store_dwordx4 v[{32+4*row}:{35+4*row}], v6, s[12:15], s30 offen offset:{16*row}")
    C0, C1, WX, WY = 64, 96, 128, 160
    def acc(a, b, i, j):
        q = {(0,0): None, (0,1): 64, (1,1): 128, (1,0): 192}[(a, b)]
        t = 4*(4*i + j)
        return ar(t, 4) if q is None else vr(q + t, 4)
    def rd_c(slot, creg, i, kh):
        base = 16 + kh + (2 if slot >= 2 else 0)
        return f"ds_read_b128 {ar(creg + 4*(2*i+kh), 4)}, v{base} offset:{(slot & 1)*32768 + i*2048}"
    def rd_w(slot, wreg, j, kh, hh):
        base = 20 + j + (4 if slot >= 2 else 0)
        return f"ds_read_b64_tr_b16 {ar(wreg + 4*(2*j+kh) + 2*hh, 2)}, v{base} offset:{(slot & 1)*32768 + kh*8192 + hh*1024}"
    A("s_waitcnt vmcnt(24)")
    A("s_barrier")
    for i in range(4):
        for kh in range(2): A(rd_c(0, C0, i, kh))
    for j in range(4):
        for kh in range(2):
            for hh in range(2): A(rd_w(0, WX, j, kh, hh))
    A("s_mov_b32 s26, 7")
    stamp(A, 0, 1)
    A("s_waitcnt vmcnt(16) lgkmcnt(0)")
    A("s_cmp_eq_u32 s22, 0")
    A("s_cbranch_scc0 KV_V")

    def body(isV, last):
        mf = []; fixed = []; streams = []
        def quad(a, b, creg, wreg, tagc, tagw):
            for i in range(4):
                js = range(4) if i % 2 == 0 else range(3, -1, -1)
                for n_, j in enumerate(js):
                    ks = (0, 1) if n_ % 2 == 0 else (1, 0)
                    for kh in ks:
                        c = ar(creg + 4*(2*i+kh), 4); w = ar(wreg + 4*(2*j+kh), 4)
                        x, y = (c, w) if isV else (w, c)
                        d = acc(a, b, i, j)
                        need = []
                        if tagc: need.append((tagc, i, kh))
                        if tagw: need += [(tagw, j, kh, 0), (tagw, j, kh, 1)]
                        mf.append((f"{MF} {d}, {x}, {y}, {d}", need))
        dgaps = [3 + 5*k for k in range(8)]
        def place(base, start, texts):
            g = start
            for rid, t, step in texts:
                while (g in dgaps and not last): g += 1
                fixed.append((base + g, It(t, "d", rid=rid)))
                g += step
        for e in range(2):
            W0, W1 = (WX, WY) if e == 0 else (WY, WX)
            for half in range(2):
                n = 2*e + half
                base = 64*n
                slot = (n + 1) % 4
                tc, tw = f"c{n}", f"w{n}"
                final = last and n == 3
                if half == 0:
                    quad(0, 0, C0, W0, None, None)
                    quad(0, 1, C0, W1, None, tw)
                    rw = (1, W1); rc = (30, C1)
                else:
                    quad(1, 1, C1, W1, None, None)
                    quad(1, 0, C1, W0, None, None)
                    rc = (1, C0); rw = (32, W1)
                if not final:
                    fixed.append((base, It("s_barrier", "b")))
                    place(base, rw[0], [((tw, j, kh, hh), rd_w(slot, rw[1], j, kh, hh), 1) for j in range(4) for kh in range(2) for hh in range(2)])
                    place(base, rc[0], [((tc, i, kh), rd_c(slot, rc[1], i, kh), 2) for i in range(4) for kh in range(2)])
                if not last:
                    ds_ = n % 4
                    fixed.append((base + dgaps[0] - 1, It(f"s_add_u32 m0, s27, {ds_*32768}", "s")))
                    fixed.append((base + dgaps[4] - 1, It(f"s_add_u32 m0, s27, {ds_*32768+16384}", "s")))
                    for i in range(4):
                        fixed.append((base + dgaps[i], It(dma_c(i), "m")))
                        fixed.append((base + dgaps[4+i], It(dma_w(i), "m")))
                    fixed.append((base + dgaps[3] + 1, It(adv_c(n & 1), "s")))
                    fixed.append((base + dgaps[7] + 1, It(adv_w(n & 1), "s")))
                    vm = 16
                else:
                    vm = [8, 0, 0, 0][n]
                if n < 3 or not last:
                    w = f"s_waitcnt vmcnt({vm}) lgkmcnt(0)" if not (last and n == 2) else "s_waitcnt lgkmcnt(0)"
                    fixed.append((base + 63, It(w, "s")))
        if not last:
            fixed.append((250, It("s_sub_u32 s26, s26, 1", "s")))
            fixed.append((251, It("s_cmp_lg_u32 s26, 0", "s")))
        tq = [0]
        def epi(a, b, lo):
            st = []
            for o in range(4):
                for u in range(2):
                    if isV: tiles = [(2*u, o), (2*u+1, o)]; so = a*65536 + b*8192 + (o >> 1)*4096; imm = (o & 1)*2048 + u*1024
                    else:   tiles = [(o, 2*u), (o, 2*u+1)]; so = a*65536 + o*8192; imm = (2*b + u)*1024
                    t = 32 + 4*(tq[0] % 4); tq[0] += 1
                    st.append(It(f"s_mov_b32 s28, {so}", "s", lo))
                    for k, (i, j) in enumerate(tiles):
                        if (a, b) == (0, 0):
                            s0 = 4*(4*i + j); x = 48 + 4*((2*tq[0] + k) % 4)
                            for r in range(4): st.append(It(f"v_accvgpr_read_b32 v{x+r}, a{s0+r}", "v", lo))
                        else:
                            x = {(0,1): 64, (1,1): 128, (1,0): 192}[(a, b)] + 4*(4*i + j)
                        st.append(It(f"v_cvt_pk_bf16_f32 v{t+2*k}, v{x}, v{x+1}", "v", lo))
                        st.append(It(f"v_cvt_pk_bf16_f32 v{t+2*k+1}, v{x+2}, v{x+3}", "v", lo))
                    st.append(It(f"buffer_store_dwordx4 v[{t}:{t+3}], v28, s[12:15], s28 offen offset:{imm} {OPT['st_kv']}", "m", lo, gapafter=1))
            return st
        if last:
            streams.append(epi(0, 0, 128+32+8) + epi(0, 1, 128+64+8) + epi(1, 1, 128+96+8))
        sched(A, mf, fixed, streams, name=f"kv{isV}{last}")
        if last:
            A("s_nop 7")
            for it in epi(1, 0, 0): A(it.text)

    for isV in (0, 1):
        if isV: A("KV_V:")
        A(".p2align 6")
        A(f"KV_LOOP{isV}:")
        body(isV, False)
        A(f"s_cbranch_scc1 KV_LOOP{isV}")
        stamp(A, 0, 2)
        body(isV, True)
        stamp(A, 0, 3)
        if OPT["stamp"]:
            A("s_waitcnt vmcnt(0)")
            stamp(A, 0, 4)
        if not isV: A("s_endpgm")
    A("KV_END:")
    kernel_end(A, name, 512, 256)


BIG = 2.0**100
PTHR = 2.0**30
def gen_attn(A):
    name = "attn_kernel"
    vOff, vWq, vLin, vWo, vRd, vL16 = 4, 5, 6, 7, 8, 9
    NEGM, LS, TS, TMP, vThr, vFlag = 10, 12, 14, 16, 24, 25
    P = [32, 48]; S = 64; C = 96; O = 128; CTX = 64; AD = 32
    RING, Q, XN = 0, 64, 128
    sOff, sA, sB, sInc, sCnt, sSec, sDs, sRW, sRR, sDel = 24, 25, 26, 27, 28, 29, 30, 31, 32, 33
    sBlk, sT0, sN, sRem, sTile, sThr, sMode = 40, 41, 42, 43, 44, 45, 46
    sBlk1, sT01, sN1, sMode1, sST0, sSN, sKV, sPair, sPend = 48, 49, 50, 51, 52, 53, 54, 55, 56
    sO0, sO1 = 57, 58
    kernel_begin(A, name)
    A("s_cmp_ge_u32 s2, 256")
    A("s_cbranch_scc1 AT_END")
    A(f"s_load_dwordx2 s[8:9], s[0:1], {KA['wq']}")
    A(f"s_load_dwordx2 s[10:11], s[0:1], {KA['wo']}")
    A(f"s_load_dwordx2 s[16:17], s[0:1], {KA['ws']}")
    A("v_lshrrev_b32 v2, 6, v0")
    A("v_and_b32 v1, 63, v0")
    A("v_readfirstlane_b32 s20, v2")
    A("s_and_b32 s21, s2, 7")
    A("s_lshl_b32 s21, s21, 1")
    A("s_bfe_u32 s22, s2, 0x10003")
    A("s_add_u32 s21, s21, s22")
    A("s_bfe_u32 s22, s2, 0x10004")
    A("s_lshr_b32 s23, s2, 5")
    A("s_lshl_b32 s60, s23, 1")
    A(f"s_sub_i32 s61, {OPT['nh0']}, s60")
    A("s_max_i32 s61, s61, 0")
    A("s_sub_u32 s62, 15, s23")
    A(f"s_lshl_b32 s{sKV}, s21, 21")
    A(f"s_lshl_b32 s{sPair}, s21, 3")
    A(f"s_add_u32 s{sPair}, s{sPair}, s23")
    A(f"s_mov_b32 s{sPend}, 0")
    A("s_cmp_eq_u32 s22, 0")
    A("s_cbranch_scc1 AT_B")
    A(f"s_mov_b32 s{sBlk1}, s62")
    A(f"s_mov_b32 s{sT01}, s61")
    A("s_sub_u32 s63, 32, s60")
    A(f"s_sub_u32 s{sN1}, s63, s61")
    A("s_cmp_eq_u32 s61, 0")
    A(f"s_cselect_b32 s{sMode1}, 0, 2")
    A("s_mov_b32 s61, 0")
    A("s_branch AT_J")
    A("AT_B:")
    A(f"s_mov_b32 s{sBlk1}, s23")
    A(f"s_mov_b32 s{sT01}, 0")
    A(f"s_add_u32 s{sN1}, s60, 2")
    A(f"s_mov_b32 s{sMode1}, 0")
    A("AT_J:")
    A("s_cmp_eq_u32 s61, 0")
    A(f"s_cselect_b32 s{sBlk}, s{sBlk1}, s62")
    A(f"s_cselect_b32 s{sT0}, s{sT01}, 0")
    A(f"s_cselect_b32 s{sN}, s{sN1}, s61")
    A(f"s_cselect_b32 s{sMode}, s{sMode1}, 1")
    A(f"s_cselect_b32 s{sSec}, 4, 0")
    A(f"s_mov_b32 s{sST0}, s{sT0}")
    A(f"s_mov_b32 s{sSN}, s{sN}")
    A(f"v_lshlrev_b32 v{vL16}, 4, v1")
    A("s_lshl_b32 s60, s20, 10")
    A(f"v_add_u32 v{vLin}, s60, v{vL16}")
    A(f"s_mov_b32 s{sRW}, s60")
    A(f"s_mov_b32 s{sRR}, 0")
    A("v_lshrrev_b32 v2, 5, v1")
    A("s_lshl_b32 s60, s20, 1")
    A("v_add_u32 v2, s60, v2")
    A("v_bfe_u32 v3, v1, 1, 4")
    A("v_xor_b32 v3, v3, v2")
    A(f"v_lshlrev_b32 v{vWq}, 13, v2")
    A(f"v_lshl_add_u32 v{vWq}, v3, 5, v{vWq}")
    A("v_and_b32 v3, 1, v1")
    A(f"v_lshl_add_u32 v{vWq}, v3, 4, v{vWq}")
    A("s_lshl_b32 s60, s21, 9")
    A(f"v_add_u32 v{vWq}, s60, v{vWq}")
    A("v_lshrrev_b32 v2, 3, v1")
    A("s_lshl_b32 s60, s21, 8")
    A("s_lshl_b32 s61, s20, 3")
    A("s_add_u32 s60, s60, s61")
    A("v_add_u32 v2, s60, v2")
    A(f"v_mul_u32_u24 v{vWo}, 896, v2")
    A(f"v_lshl_add_u32 v{vWo}, v3, 4, v{vWo}")
    A("v_bfe_u32 v2, v1, 1, 2")
    A("v_lshrrev_b32 v3, 4, v1")
    A("v_xor_b32 v2, v2, v3")
    A(f"v_lshl_add_u32 v{vWo}, v2, 5, v{vWo}")
    A("v_and_b32 v2, 15, v1")
    A("s_lshl_b32 s60, s20, 4")
    A("v_add_u32 v2, s60, v2")
    A("v_lshlrev_b32 v3, 2, v3")
    A(f"v_sub_u32 v{vThr}, v2, v3")
    A("s_waitcnt lgkmcnt(0)")
    srd(A, 12, 16, WS_SIZE)
    srd(A, 4, 8, 448*4096*2)
    stamp(A, 1, 0)
    def set_wq():
        A(f"v_mov_b32 v{vOff}, v{vWq}")
        A(f"s_mov_b32 s{sA}, 0")
        A(f"s_mov_b32 s{sB}, {64*8192}")
        A(f"s_mov_b32 s{sInc}, {128*8192}")
        A(f"s_mov_b32 s{sDs}, {8*8192}")
        A(f"s_mov_b32 s{sCnt}, 6")
    set_wq()
    DMA = f"buffer_load_dwordx4 v{vOff}, s[4:7], s{sOff} offen lds"
    head_s = [f"s_mov_b32 s{sOff}, s{sA}", f"s_mov_b32 m0, s{sRW}", f"s_mov_b32 s{sA}, s{sB}", f"s_add_u32 s{sB}, s{sOff}, s{sInc}"]
    step_s = ["s_add_u32 m0, m0, 4096", f"s_add_u32 s{sOff}, s{sOff}, s{sDs}"]
    tail_s = [f"s_add_u32 s{sRW}, s{sRW}, 32768", f"s_and_b32 s{sRW}, s{sRW}, 0x1ffff"]
    def load_xn(blk):
        A(f"s_lshl_b32 s60, s{blk}, 3")
        A("s_add_u32 s60, s60, s20")
        A("s_mul_i32 s60, s60, 14336")
        A(f"s_add_u32 s60, s60, {WS_XN}")
        A(f"s_add_u32 s61, s60, {4*14336}")
        for ks in range(14):
            for qg in range(2):
                A(f"buffer_load_dwordx4 {ar(XN + 4*(2*ks+qg), 4)}, v{vL16}, s[12:15], s{60+qg} offen offset:{(ks % 4)*1024}")
            if ks % 4 == 3:
                A("s_add_u32 s60, s60, 4096")
                A("s_add_u32 s61, s61, 4096")
    def prime():
        for t in head_s: A(t)
        for i in range(8):
            A(DMA)
            if i < 7:
                for t in step_s: A(t)
        for t in tail_s: A(t)
        A(f"s_sub_u32 s{sCnt}, s{sCnt}, 1")
    prime()
    load_xn(sBlk)
    prime(); prime()
    A("s_waitcnt vmcnt(16)")
    stubs = []
    DG = [3, 7, 13, 17, 23, 27, 33, 37]
    def stream_items(base, fixed, sc, dma=True, mark=None, delta=False, nocheck=False):
        if dma:
            fixed.append((base + 0, It(head_s[0], "s")))
            fixed.append((base + 1, It(head_s[1], "s")))
            fixed.append((base + 1, It(head_s[2], "s")))
            fixed.append((base + 2, It(head_s[3], "s")))
            for i, g in enumerate(DG):
                t = DMA + (f"\n;@mark {mark}" if mark and i == 7 else "")
                fixed.append((base + g, It(t, "m")))
                if i < 7:
                    fixed.append((base + g + 1, It(step_s[0], "s")))
                    fixed.append((base + g + 2, It(step_s[1], "s")))
        if delta:
            sc.append(It(f"s_add_u32 s60, s{sRR}, 32768", "s", base + 4))
            sc.append(It(f"s_and_b32 s60, s60, 0x1ffff", "s"))
            sc.append(It(f"s_sub_u32 s{sDel}, s60, s{sRR}", "s"))
            sc.append(It(f"s_mov_b32 s{sRR}, s60", "s", hi=base + 21))
        else:
            sc.append(It(f"s_add_u32 s{sRR}, s{sRR}, 32768", "s", base + 4))
            sc.append(It(f"s_and_b32 s{sRR}, s{sRR}, 0x1ffff", "s", hi=base + 37))
        if dma:
            sc.append(It(tail_s[0], "s", base + 44))
            sc.append(It(tail_s[1], "s", hi=base + 63))
            if not nocheck:
                o, b = A.label("AT_NS"), A.label("AT_NB")
                sc.append(It(f"s_sub_u32 s{sCnt}, s{sCnt}, 1", "s"))
                sc.append(It(f"s_cbranch_scc1 {o}\n{b}:", "s", hi=base + 63))
                stubs.append((o, b))
    def ring(f): return ar(RING + 4*(f % 16), 4)
    def rd128(f): return f"ds_read_b128 {ring(f)}, v{vRd} offset:{f*1024}"
    TAILG = list(range(42, 64, 2)) + [63]
    CARRY128 = lambda tag: [((tag, f), TAILG[f] - 64) for f in range(12)]
    def own128(base, fixed, tag):
        for f in range(12, 32): fixed.append((base + 2*(f-12), It(rd128(f), "d", rid=(tag, f))))
    def tail128(base, fixed, tag, wait="s_waitcnt vmcnt(16)"):
        fixed.append((base + 38, It(f"v_add_u32 v{vRd}, s{sRR}, v{vL16}", "v")))
        fixed.append((base + 40, It(wait, "s")))
        fixed.append((base + 41, It("s_barrier", "b")))
        for f in range(12): fixed.append((base + TAILG[f], It(rd128(f), "d", rid=(tag, f))))
    def spread(n, gaps):
        extra = n - len(gaps); out = []; acc = 0.0
        for g in gaps:
            out.append(g); acc += extra / len(gaps)
            if acc >= 0.999: out.append(g); acc -= 1.0
        assert len(out) == n, (len(out), n)
        return out
    busy = set(DG) | {1}
    OWN_TR = spread(40, [g for g in range(0, 40) if g not in busy])
    TAIL_TR = spread(24, list(range(42, 64)))
    def mf_qk(tag, cin):
        mf = []
        for kt in range(4):
            for qg in range(2):
                for T in range(8):
                    d = vr(S + 4*(2*kt+qg), 4)
                    c = vr(cin + 4*(2*kt+qg), 4) if T == 0 else d
                    mf.append((f"{MF} {d}, {ring(8*kt+T)}, {ar(Q + 4*(8*qg+T), 4)}, {c}", [(tag, 8*kt+T)]))
        return mf
    def mf_pv(tag, p):
        mf = []
        for dt in range(16):
            for qg, T in ((0,0),(0,1),(1,1),(1,0)):
                d = vr(O + 4*(2*dt+qg), 4)
                mf.append((f"{MF} {d}, {ring(2*dt+T)}, {vr(p + 4*(2*qg+T), 4)}, {d}", [(tag, 2*dt+T)]))
        return mf
    TSETS = [16, 20, 28]
    def softmax_groups(p, lo_of, first_dep=None):
        exs, posts, last_use = [], [], {}
        gi = 0
        for kt in range(4):
            for qg in range(2):
                t = TSETS[gi % 3]; s0 = S + 4*(2*kt+qg); d = p + 4*(2*qg + kt//2) + 2*(kt % 2)
                ex = []
                for j in range(4):
                    deps = [(last_use[t+j], 0)] if t+j in last_use else []
                    ex.append(It(f"v_exp_f32 v{t+j}, v{s0+j}", "x", lo_of(kt, qg), deps=deps))
                def post(txt, *js):
                    it = It(txt, "v", deps=[(ex[j], 1) for j in js])
                    for j in js: last_use[t+j] = it
                    posts.append(it)
                if kt == 0: post(f"v_add_f32 v{TS+qg}, v{t}, v{t+1}", 0, 1)
                else:
                    post(f"v_add_f32 v{TS+qg}, v{TS+qg}, v{t}", 0)
                    post(f"v_add_f32 v{TS+qg}, v{TS+qg}, v{t+1}", 1)
                post(f"v_cvt_pk_bf16_f32 v{d}, v{t}, v{t+1}", 0, 1)
                post(f"v_add_f32 v{TS+qg}, v{TS+qg}, v{t+2}", 2)
                post(f"v_add_f32 v{TS+qg}, v{TS+qg}, v{t+3}", 3)
                post(f"v_cvt_pk_bf16_f32 v{d+1}, v{t+2}, v{t+3}", 2, 3)
                exs += ex
                gi += 1
        return exs, posts
    def softmax_plain(p):
        exs, posts = softmax_groups(p, lambda kt, qg: 0)
        pi = 0
        for gi in range(9):
            for it in exs[4*gi:4*gi+4]: A(it.text)
            if gi == 8: A("s_nop 0")
            if gi >= 1:
                k = 5 if gi <= 2 else 6
                for it in posts[pi:pi+k]: A(it.text)
                pi += k

    A("AT_SEG:")
    stamp(A, 1, 1)
    A("v_lshrrev_b32 v2, 2, v1")
    A("v_and_b32 v3, 7, v2")
    A("v_lshlrev_b32 v2, 9, v2")
    A("v_and_b32 v26, 3, v1")
    A("v_lshl_add_u32 v2, v26, 3, v2")
    A(f"v_add_u32 v2, s{sRR}, v2")
    for k in range(8):
        A(f"v_xor_b32 v26, {k}, v3")
        A(f"v_lshl_add_u32 v{AD+k}, v26, 5, v2")
    A("s_barrier")
    def rdq(rho):
        f, hh = rho // 2, rho % 2
        dt, kh = f // 2, f % 2
        return f"ds_read_b64_tr_b16 {ar(RING + 4*(f % 16) + 2*hh, 2)}, v{AD + (dt & 7)} offset:{kh*16384 + hh*8192 + (dt >> 3)*256}"
    for rho in range(24): A(rdq(rho))
    mf = []; fixed = []; sc = []; va = []
    for ph in range(7):
        base = 64*ph
        for dt in range(16):
            for qg, kh in ((0,0),(0,1),(1,1),(1,0)):
                d = vr(O + 4*(2*dt+qg), 4)
                first = ph == 0 and (qg, kh) in ((0,0),(1,1))
                f = 2*dt + kh
                mf.append((f"{MF} {d}, {ring(f)}, {ar(XN + 4*(2*(2*ph+kh)+qg), 4)}, {'0' if first else d}", [(ph, 2*f), (ph, 2*f+1)]))
        stream_items(base, fixed, sc, delta=True)
        for i, g in enumerate(OWN_TR): fixed.append((base + g, It(rdq(24+i), "d", rid=(ph, 24+i))))
        if ph < 6:
            if ph < 2:
                l = A.label("AT_W")
                sc.insert(len(sc) - 4, It(f"s_cmp_lg_u32 s{sPend}, 0", "s", base + 36, hi=base + 39))
                fixed.append((base + 40, It(f"s_cbranch_scc1 {l}\ns_waitcnt vmcnt(16)\n{l}:", "s")))
            else:
                fixed.append((base + 40, It("s_waitcnt vmcnt(16)", "s")))
            fixed.append((base + 41, It("s_barrier", "b")))
            for i, g in enumerate(TAIL_TR): fixed.append((base + g, It(rdq(i), "d", rid=(ph+1, i))))
            for k in range(8):
                va.append(It(f"v_add_u32 v{AD+k}, s{sDel}, v{AD+k}", "v", base + max(OWN_TR[4*(8+k)+3-24], 22), hi=base + (TAIL_TR[4*k] - 1 if k < 6 else 63)))
            if ph == 2:
                o, b = A.label("AT_FS"), A.label("AT_FB")
                sc.append(It(f"s_cmp_lg_u32 s{sPend}, 0", "s"))
                sc.append(It(f"s_cbranch_scc1 {o}\n{b}:", "s", hi=base + 63))
                flagstub = (o, b)
        else:
            tail128(base, fixed, "k0")
            n_ = 0
            for T in range(8):
                for qg in range(2):
                    t = TMP + 4*(n_ % 2); n_ += 1
                    lo = base + 8*T + 7 + 8
                    for k in range(2):
                        x = O + 4*(2*(2*T+k)+qg)
                        va.append(It(f"v_cvt_pk_bf16_f32 v{t+2*k}, v{x}, v{x+1}", "v", lo))
                        va.append(It(f"v_cvt_pk_bf16_f32 v{t+2*k+1}, v{x+2}, v{x+3}", "v", lo))
                    for k in range(4): va.append(It(f"v_accvgpr_write_b32 a{Q + 4*(8*qg+T) + k}, v{t+k}", "v", lo))
    sched(A, mf, fixed, [sc, va], carry=[((0, i), -30) for i in range(24)], name="qproj", overnop=7)
    stamp(A, 1, 2)
    for qg in range(2):
        A(f"v_mov_b32 v{NEGM+qg}, 0")
        A(f"v_mov_b32 v{LS+qg}, 0")
    A(f"s_mov_b32 s{sTile}, s{sT0}")
    A(f"s_sub_u32 s{sRem}, s{sN}, 1")
    A(f"s_cmp_eq_u32 s{sMode}, 1")
    A(f"s_cselect_b32 s{sThr}, 0, 2")
    A("s_call_b64 s[36:37], AT_SETC")
    fixed = []; sc = []
    stream_items(0, fixed, sc)
    own128(0, fixed, "k0"); tail128(0, fixed, "n")
    va = [It(f"v_mov_b64 v[{r}:{r+1}], 0", "v") for r in range(O, O+128, 2)]
    sched(A, mf_qk("k0", C), fixed, [sc, va], carry=CARRY128("k0"), name="qk0")
    def fixup(p, init):
        A("s_nop 7")
        for qg in range(2):
            r = [S + 4*(2*kt+qg) + j for kt in range(4) for j in range(4)]
            A(f"v_max3_f32 v{26+qg}, v{r[0]}, v{r[1]}, v{r[2]}")
            for k in range(3, 15, 2): A(f"v_max3_f32 v{26+qg}, v{26+qg}, v{r[k]}, v{r[k+1]}")
            A(f"v_max_f32 v{26+qg}, v{26+qg}, v{r[15]}")
        crossrow(A, "v_max_f32", [26, 27], [2, 3])
        for qg in range(2):
            if not init: A(f"v_max_f32 v{26+qg}, 0, v{26+qg}")
            A(f"v_sub_f32 v{NEGM+qg}, v{NEGM+qg}, v{26+qg}")
            for kt in range(4):
                for j in range(4):
                    x = 4*(2*kt+qg) + j
                    A(f"v_sub_f32 v{S+x}, v{S+x}, v{26+qg}")
                    A(f"v_sub_f32 v{C+x}, v{C+x}, v{26+qg}")
        if not init:
            for qg in range(2): A(f"v_exp_f32 v{26+qg}, -v{26+qg}")
            A("s_nop 0")
            for qg in range(2):
                A(f"v_mul_f32 v{LS+qg}, v{LS+qg}, v{26+qg}")
                for dt in range(16):
                    for j in range(4):
                        x = O + 4*(2*dt+qg) + j
                        A(f"v_mul_f32 v{x}, v{x}, v{26+qg}")
        softmax_plain(p)
    fixup(P[0], True)
    stamp(A, 1, 3)
    A("s_branch AT_H1B")
    A(".p2align 6")
    for par in range(2):
        A(f"AT_BODY{par}:")
        fixed = []; sc = []
        stream_items(0, fixed, sc); own128(0, fixed, "n"); tail128(0, fixed, "v")
        stream_items(64, fixed, sc); own128(64, fixed, "v"); tail128(64, fixed, "n2")
        sc.append(It(f"s_sub_u32 s{sRem}, s{sRem}, 1", "s", 120))
        sc.append(It(f"s_cmp_le_u32 s{sRem}, s{sThr}", "s", hi=127))
        va = [It(f"v_add_f32 v{LS+qg}, v{LS+qg}, v{TS+qg}", "v", 2) for qg in range(2)]
        exs, posts = softmax_groups(P[1-par], lambda kt, qg: 16*kt + 8*qg + 15)
        va += posts
        va.append(It(f"v_max_f32 v26, v{TS}, v{TS+1}", "v"))
        va.append(It(f"v_cmp_nge_f32 vcc, {hex(f2u(PTHR))}, v26", "v"))
        sched(A, mf_qk("n", C) + mf_pv("v", P[par]), fixed, [sc, exs, va], carry=CARRY128("n"), name=f"body{par}")
        A(f"s_cbranch_vccnz AT_H{par}")
        if par == 0:
            A(f"s_cbranch_scc1 AT_H0B")
        else:
            A(f"s_cbranch_scc0 AT_BODY0")
            A(f"s_branch AT_H1B")
    for par in range(2):
        A(f"AT_H{par}:")
        fixup(P[1-par], False)
        A(f"AT_H{par}B:")
        A(f"s_cmp_eq_u32 s{sRem}, 0")
        A(f"s_cbranch_scc1 AT_LAST{1-par}")
        A(f"s_cmp_le_u32 s{sRem}, s{sThr}")
        A(f"s_cbranch_scc0 AT_BODY{1-par}")
        A(f"s_add_u32 s{sTile}, s{sT0}, s{sN}")
        A(f"s_sub_u32 s{sTile}, s{sTile}, s{sRem}")
        A("s_call_b64 s[36:37], AT_SETC")
        A(f"s_branch AT_BODY{1-par}")
    A("AT_SETC:")
    A(f"s_lshl_b32 s60, s{sBlk}, 7")
    A(f"s_lshl_b32 s61, s{sTile}, 6")
    A("s_sub_u32 s60, s60, s61")
    A(f"v_add_u32 v2, s60, v{vThr}")
    A("v_cvt_f32_i32 v2, v2")
    A("v_add_f32 v2, 0.5, v2")
    A(f"v_mul_f32 v2, {hex(f2u(BIG))}, v2")
    for kt in range(4):
        for qg in range(2):
            for j in range(4):
                x = C + 4*(2*kt+qg) + j
                A(f"v_add_f32 v{x}, {hex(f2u(-(16*kt + j - 64*qg)*BIG))}, v2")
                A(f"v_min_f32 v{x}, v{x}, v{NEGM+qg}")
    A(f"s_lshl_b32 s60, s{sPair}, 7")
    A("s_lshl_b32 s61, s20, 2")
    A("s_add_u32 s60, s60, s61")
    A(f"s_add_u32 s60, s60, {WS_FLAG}")
    A(f"buffer_load_dword v{vFlag}, off, s[12:15], s60 sc1")
    A("s_setpc_b64 s[36:37]")
    A("AT_NEXT:")
    A(f"s_add_u32 s{sSec}, s{sSec}, 1")
    A(f"s_cmp_eq_u32 s{sSec}, 8")
    A("s_cbranch_scc1 AT_N_WO")
    A(f"s_and_b32 s62, s{sSec}, 3")
    A("s_cmp_eq_u32 s62, 0")
    A("s_cbranch_scc1 AT_N_WQ")
    A("s_cmp_eq_u32 s62, 1")
    A("s_cbranch_scc1 AT_N_K0")
    A("s_cmp_eq_u32 s62, 3")
    A("s_cbranch_scc1 AT_N_VL")
    A(f"s_mov_b32 s{sInc}, 65536")
    A(f"s_lshl_b32 s{sCnt}, s{sSN}, 1")
    A(f"s_sub_u32 s{sCnt}, s{sCnt}, 3")
    A("s_cbranch_scc0 AT_N_RET")
    A(f"s_add_u32 s{sSec}, s{sSec}, 1")
    A("AT_N_VL:")
    A(f"s_mov_b32 s{sA}, s{sB}")
    A(f"s_mov_b32 s{sCnt}, 0")
    A("AT_N_RET:")
    A("s_setpc_b64 s[34:35]")
    A("AT_N_K0:")
    srd(A, 4, 16, WS_SIZE)
    A(f"v_mov_b32 v{vOff}, v{vLin}")
    A(f"s_lshl_b32 s{sA}, s{sST0}, 16")
    A(f"s_add_u32 s{sA}, s{sA}, s{sKV}")
    A(f"s_add_u32 s{sB}, s{sA}, 65536")
    A(f"s_mov_b32 s{sInc}, 32768")
    A(f"s_mov_b32 s{sDs}, 4096")
    A(f"s_mov_b32 s{sCnt}, 0")
    A("s_setpc_b64 s[34:35]")
    A("AT_N_WQ:")
    srd(A, 4, 8, 448*4096*2)
    set_wq()
    A(f"s_mov_b32 s{sST0}, s{sT01}")
    A(f"s_mov_b32 s{sSN}, s{sN1}")
    A("s_setpc_b64 s[34:35]")
    A("AT_N_WO:")
    srd(A, 4, 10, 4096*448*2)
    A(f"v_mov_b32 v{vOff}, v{vWo}")
    A(f"s_mov_b32 s{sA}, 0")
    A(f"s_mov_b32 s{sB}, 128")
    A(f"s_mov_b32 s{sInc}, 256")
    A(f"s_mov_b32 s{sDs}, {32*896}")
    A(f"s_mov_b32 s{sCnt}, 100")
    A("s_setpc_b64 s[34:35]")
    def po_addr():
        A(f"s_lshl_b32 s60, s{sPair}, 2")
        A("s_add_u32 s60, s60, s20")
        A("s_lshl_b32 s61, s60, 9")
        A(f"s_add_u32 s61, s61, {WS_LSE}")
        A("s_lshl_b32 s60, s60, 14")
        A(f"s_add_u32 s60, s60, {WS_PO}")
        A("v_lshlrev_b32 v2, 3, v1")
    A(f"{flagstub[0]}:")
    A(f"s_lshl_b32 s62, s{sPair}, 7")
    A("s_lshl_b32 s63, s20, 2")
    A("s_add_u32 s62, s62, s63")
    A(f"s_add_u32 s62, s62, {WS_FLAG}")
    A("v_mov_b32 v2, 1")
    A("buffer_store_dword v2, off, s[12:15], s62 sc1")
    A(f"s_branch {flagstub[1]}")
    A("AT_LAST1:")
    for r in range(16): A(f"v_mov_b32 v{P[0]+r}, v{P[1]+r}")
    A("AT_LAST0:")
    stamp(A, 1, 4)
    A(f"s_cmp_eq_u32 s{sMode}, 2")
    A("s_cbranch_scc0 AT_L1")
    A("s_mov_b32 s59, 0x100000")
    A("AT_POLL:")
    A(f"v_readfirstlane_b32 s60, v{vFlag}")
    A("s_cmp_eq_u32 s60, 1")
    A("s_cbranch_scc1 AT_GOT")
    A("s_sub_u32 s59, s59, 1")
    A("s_cbranch_scc1 AT_GOT")
    A("s_sleep 2")
    A(f"s_lshl_b32 s60, s{sPair}, 7")
    A("s_lshl_b32 s61, s20, 2")
    A("s_add_u32 s60, s60, s61")
    A(f"s_add_u32 s60, s60, {WS_FLAG}")
    A(f"buffer_load_dword v{vFlag}, off, s[12:15], s60 sc1")
    A("s_waitcnt vmcnt(0)")
    A("s_branch AT_POLL")
    A("AT_GOT:")
    po_addr()
    A(f"buffer_load_dwordx2 v[28:29], v2, s[12:15], s61 offen sc1")
    for f in range(16):
        A(f"buffer_load_dwordx4 {vr(CTX + 4*f, 4)}, v{vL16}, s[12:15], s60 offen offset:{(f % 4)*1024} sc1")
        if f % 4 == 3 and f < 15: A("s_add_u32 s60, s60, 4096")
    A("AT_L1:")
    fixed = []; sc = []
    stream_items(0, fixed, sc); own128(0, fixed, "n")
    va = [It(f"v_add_f32 v{LS+qg}, v{LS+qg}, v{TS+qg}", "v", 2) for qg in range(2)]
    sched(A, mf_pv("n", P[0]), fixed, [sc, va], carry=CARRY128("n"), name="lastpv")
    stamp(A, 1, 5)
    crossrow(A, "v_add_f32", [LS, LS+1], [2, 3])
    A(f"s_cmp_eq_u32 s{sMode}, 2")
    A("s_cbranch_scc1 AT_COMB")
    A(f"s_cmp_eq_u32 s{sMode}, 1")
    A("s_cbranch_scc0 AT_N1")
    load_xn(sBlk1)
    A("AT_N1:")
    for qg in range(2): A(f"v_rcp_f32 v{26+qg}, v{LS+qg}")
    A("s_nop 0")
    for qg in range(2):
        for T in range(8):
            for k in range(2):
                x = O + 4*(2*(2*T+k)+qg); d = CTX + 4*(8*qg+T) + 2*k
                for h_ in range(2):
                    A(f"v_pk_mul_f32 v[{x+2*h_}:{x+2*h_+1}], v[{x+2*h_}:{x+2*h_+1}], v[26:27] op_sel:[0,{qg}] op_sel_hi:[1,{qg}]")
                for h_ in range(2):
                    A(f"v_cvt_pk_bf16_f32 v{d+h_}, v{x+2*h_}, v{x+2*h_+1}")
    A(f"s_cmp_eq_u32 s{sMode}, 1")
    A("s_cbranch_scc0 AT_OPROJ")
    for qg in range(2): A(f"v_log_f32 v{28+qg}, v{LS+qg}")
    po_addr()
    for qg in range(2): A(f"v_sub_f32 v{28+qg}, v{28+qg}, v{NEGM+qg}")
    A(f"buffer_store_dwordx2 v[28:29], v2, s[12:15], s61 offen sc1")
    for f in range(16):
        A(f"buffer_store_dwordx4 {vr(CTX + 4*f, 4)}, v{vL16}, s[12:15], s60 offen offset:{(f % 4)*1024} sc1")
        if f % 4 == 3 and f < 15: A("s_add_u32 s60, s60, 4096")
    A(f"s_mov_b32 s{sBlk}, s{sBlk1}")
    A(f"s_mov_b32 s{sT0}, s{sT01}")
    A(f"s_mov_b32 s{sN}, s{sN1}")
    A(f"s_mov_b32 s{sMode}, s{sMode1}")
    A(f"s_mov_b32 s{sPend}, 1")
    A("s_waitcnt vmcnt(17)")
    A("s_branch AT_SEG")
    A("AT_COMB:")
    for qg in range(2): A(f"v_log_f32 v{26+qg}, v{LS+qg}")
    A("s_waitcnt vmcnt(8)")
    for qg in range(2):
        A(f"v_sub_f32 v{26+qg}, v{26+qg}, v{NEGM+qg}")
        A(f"v_sub_f32 v{26+qg}, v{26+qg}, v{28+qg}")
    for qg in range(2):
        A(f"v_exp_f32 v{28+qg}, v{26+qg}")
        A(f"v_exp_f32 v{26+qg}, -v{26+qg}")
    A("s_nop 0")
    for qg in range(2):
        A(f"v_add_f32 v{28+qg}, 1.0, v{28+qg}")
        A(f"v_add_f32 v{26+qg}, 1.0, v{26+qg}")
        A(f"v_mul_f32 v{26+qg}, v{26+qg}, v{LS+qg}")
    for qg in range(2):
        A(f"v_rcp_f32 v{28+qg}, v{28+qg}")
        A(f"v_rcp_f32 v{26+qg}, v{26+qg}")
    A("s_nop 0")
    n_ = 0
    for qg in range(2):
        for T in range(8):
            for k in range(2):
                x = O + 4*(2*(2*T+k)+qg); d = CTX + 4*(8*qg+T) + 2*k
                t = TMP + 4*(n_ % 2); n_ += 1
                for h_ in range(2):
                    A(f"v_lshlrev_b32 v{t+2*h_}, 16, v{d+h_}")
                    A(f"v_and_b32 v{t+2*h_+1}, 0xffff0000, v{d+h_}")
                    A(f"v_pk_mul_f32 v[{x+2*h_}:{x+2*h_+1}], v[{x+2*h_}:{x+2*h_+1}], v[26:27] op_sel:[0,{qg}] op_sel_hi:[1,{qg}]")
                for h_ in range(2):
                    A(f"v_pk_fma_f32 v[{x+2*h_}:{x+2*h_+1}], v[{t+2*h_}:{t+2*h_+1}], v[28:29], v[{x+2*h_}:{x+2*h_+1}] op_sel:[0,{qg},0] op_sel_hi:[1,{qg},1]")
                for h_ in range(2):
                    A(f"v_cvt_pk_bf16_f32 v{d+h_}, v{x+2*h_}, v{x+2*h_+1}")
    A("AT_OPROJ:")
    stamp(A, 1, 6)
    A("v_lshrrev_b32 v2, 2, v1")
    A("v_bfe_u32 v3, v2, 1, 2")
    A("v_lshlrev_b32 v2, 7, v2")
    A("v_and_b32 v26, 3, v1")
    A("v_lshl_add_u32 v2, v26, 3, v2")
    A(f"v_add_u32 v2, s{sRR}, v2")
    for k in range(4):
        A(f"v_xor_b32 v26, {k}, v3")
        A(f"v_lshl_add_u32 v{AD+k}, v26, 5, v2")
    A(f"s_lshl_b32 s{sO0}, s{sBlk}, 3")
    A(f"s_add_u32 s{sO0}, s{sO0}, s20")
    A(f"s_lshl_b32 s{sO0}, s{sO0}, 4")
    A(f"s_add_u32 s{sO0}, s{sO0}, s21")
    A(f"s_mul_i32 s{sO0}, s{sO0}, 14336")
    A(f"s_add_u32 s{sO0}, s{sO0}, {WS_OP}")
    A(f"s_add_u32 s{sO1}, s{sO0}, {64*14336}")
    A("s_waitcnt vmcnt(16)")
    A("s_barrier")
    def rdo(rho):
        f, hh = rho // 2, rho % 2
        mt, T = f // 8, f % 8
        return f"ds_read_b64_tr_b16 {ar(RING + 4*(f % 16) + 2*hh, 2)}, v{AD + mt} offset:{T*4096 + hh*2048}"
    for rho in range(24): A(rdo(rho))
    mf = []; fixed = []; sc = []; va = []; vb = []
    n_ = 0
    def fit(gaps, lo):
        out = []; cnt = {}
        gi = 0
        for l in lo:
            while gaps[gi] < l or cnt.get(gaps[gi], 0) >= 2: gi += 1
            out.append(gaps[gi]); cnt[gaps[gi]] = cnt.get(gaps[gi], 0) + 1
        return out
    for ph in range(7):
        base = 64*ph
        ob = O + 32*(ph % 2)
        for mt in range(4):
            for qg in range(2):
                for T in range(8):
                    d = vr(ob + 4*(2*mt+qg), 4); f = 8*mt + T
                    mf.append((f"{MF} {d}, {ring(f)}, {vr(CTX + 4*(8*qg+T), 4)}, {'0' if T == 0 else d}", [(ph, 2*f), (ph, 2*f+1)]))
        dma = ph < 4
        stream_items(base, fixed, sc, dma=dma, mark=f"wo{ph+3}", delta=True, nocheck=True)
        SG = [11, 21, 47, 55]
        war = lambda f: 16*((f-16)//8) + 8 + f % 8 if f >= 16 else 0
        og = [g for g in range(0, 40) if (g not in busy or not dma) and g not in SG]
        pos = spread(40, og)
        pos = fit(og, [max(pos[i], war((24+i)//2)) for i in range(40)])
        for i, g in enumerate(pos): fixed.append((base + g, It(rdo(24+i), "d", rid=(ph, 24+i))))
        if ph < 6:
            w = {0: "@wo_start+8", 1: "@wo_start+0"}.get(ph, f"@wo{ph+1}+0")
            fixed.append((base + 40, It(f"s_waitcnt vmcnt({w})", "s")))
            fixed.append((base + 41, It("s_barrier", "b")))
            tg = [g for g in range(42, 64) if g not in SG]
            tp = spread(24, tg)
            tp = fit(tg, [max(tp[i], war(32 + i//2)) for i in range(24)])
            for i, g in enumerate(tp): fixed.append((base + g, It(rdo(i), "d", rid=(ph+1, i))))
            los = [22, 22, max(pos[23], 22), pos[39]]
            his = [39, tp[16] - 1, 63, 63]
            for k in range(4): va.append(It(f"v_add_u32 v{AD+k}, s{sDel}, v{AD+k}", "v", base + los[k], hi=base + his[k]))
        for u in range(2):
            for qg in range(2):
                t = 40 + 4*(n_ % 4); n_ += 1
                for k in range(2):
                    x = ob + 4*(2*(2*u+k)+qg); lo = base + 16*(2*u+k) + 8*qg + 15
                    vb.append(It(f"v_cvt_pk_bf16_f32 v{t+2*k}, v{x}, v{x+1}", "v", lo))
                    vb.append(It(f"v_cvt_pk_bf16_f32 v{t+2*k+1}, v{x+2}, v{x+3}", "v", lo, hi=(lo + 100 if ph < 5 else None)))
                vb.append(It(f"buffer_store_dwordx4 v[{t}:{t+3}], v{vL16}, s[12:15], s{sO0+qg} offen offset:{(ph % 2)*2048 + u*1024} {OPT['st_op']}", "m", gapafter=1))
                if ph % 2 == 1 and u == 1: vb.append(It(f"s_add_u32 s{sO0+qg}, s{sO0+qg}, 4096", "s"))
    tailv = vb[-10:]; vb = vb[:-10]
    sched(A, mf, fixed, [sc, va, vb], carry=[((0, i), -30) for i in range(24)], name="oproj", reserve=[64*ph + g for ph in range(7) for g in (11, 21, 47, 55)])
    A("s_nop 7")
    for it in tailv: A(it.text)
    stamp(A, 1, 7)
    if OPT["stamp"]:
        A("s_waitcnt vmcnt(0)")
        stamp(A, 1, 8)
    A("s_endpgm")
    for o, b in stubs:
        A(f"{o}:")
        A("s_call_b64 s[34:35], AT_NEXT")
        A(f"s_branch {b}")
    A("AT_END:")
    kernel_end(A, name, 512, 256)


def gen_red(A):
    name = "redln_kernel"
    kernel_begin(A, name)
    A("s_cmp_ge_u32 s2, 256")
    A("s_cbranch_scc1 RL_END")
    A(f"s_load_dwordx2 s[8:9], s[0:1], {KA['x']}")
    A(f"s_load_dwordx2 s[10:11], s[0:1], {KA['ws']}")
    A("v_lshrrev_b32 v2, 6, v0")
    A("v_and_b32 v4, 7, v0")
    A("v_readfirstlane_b32 s20, v2")
    A("v_bfe_u32 v5, v0, 3, 2")
    A("v_lshrrev_b32 v6, 5, v0")
    A("v_lshlrev_b32 v7, 10, v6")
    A("v_lshl_add_u32 v7, v5, 8, v7")
    A("v_lshl_add_u32 v7, v4, 4, v7")
    A("s_lshr_b32 s21, s2, 1")
    A(f"s_mul_i32 s21, s21, {16*14336}")
    A("s_and_b32 s22, s2, 1")
    A("s_lshl_b32 s22, s22, 7")
    A("s_add_u32 s21, s21, s22")
    A(f"s_add_u32 s21, s21, {WS_OP}")
    A("v_mul_u32_u24 v8, 896, v4")
    A("v_lshl_add_u32 v8, v6, 6, v8")
    A("v_lshl_add_u32 v8, v5, 3, v8")
    A(f"s_mul_i32 s23, s2, {8*896}")
    A("s_waitcnt lgkmcnt(0)")
    srd(A, 12, 10, WS_SIZE)
    srd(A, 4, 8, 2048*448*2)
    stamp(A, 2, 0, nw=3)
    A("buffer_load_dwordx2 v[12:13], v8, s[4:7], s23 offen")
    A("buffer_load_dwordx2 v[14:15], v8, s[4:7], s23 offen offset:32")
    for h in range(16):
        A(f"buffer_load_dwordx4 {vr(32+4*h, 4)}, v7, s[12:15], s21 offen")
        if h < 15: A("s_add_u32 s21, s21, 14336")
    A("v_mov_b32 v10, 0x00003f80")
    A("v_mov_b32 v11, 0x3f800000")
    A("s_waitcnt vmcnt(16)")
    for k in range(4):
        A(f"v_lshlrev_b32 v{16+2*k}, 16, v{12+k}")
        A(f"v_and_b32 v{17+2*k}, 0xffff0000, v{12+k}")
    for h in range(16):
        A(f"s_waitcnt vmcnt({15-h})")
        for k in range(4):
            A(f"v_dot2c_f32_bf16 v{16+2*k}, v{32+4*h+k}, v10")
            A(f"v_dot2c_f32_bf16 v{17+2*k}, v{32+4*h+k}, v11")
    stamp(A, 2, 1, nw=3)
    A("s_nop 2")
    for k in range(4): A(f"v_cvt_pk_bf16_f32 v{12+k}, v{16+2*k}, v{17+2*k}")
    A(f"s_add_u32 s23, s23, {WS_H}")
    A("buffer_store_dwordx2 v[12:13], v8, s[12:15], s23 offen")
    A("buffer_store_dwordx2 v[14:15], v8, s[12:15], s23 offen offset:32")
    for k in range(4):
        A(f"v_lshlrev_b32 v{16+2*k}, 16, v{12+k}")
        A(f"v_and_b32 v{17+2*k}, 0xffff0000, v{12+k}")
    A("v_add_f32 v24, v16, v17")
    A("v_mul_f32 v25, v16, v16")
    for k in range(1, 8):
        if k > 1: A(f"v_add_f32 v24, v24, v{16+k}")
        A(f"v_fmac_f32 v25, v{16+k}, v{16+k}")
    A("s_nop 1")
    for r in (24, 25): A(f"v_add_f32_dpp v{r}, v{r}, v{r} row_ror:8 row_mask:0xf bank_mask:0xf")
    crossrow(A, "v_add_f32", [24, 25], [26, 27])
    A("s_lshl_b32 s24, s20, 6")
    A("v_lshlrev_b32 v9, 3, v4")
    A("v_add_u32 v26, s24, v9")
    A("ds_write_b64 v26, v[24:25] offset:8192")
    A("s_waitcnt lgkmcnt(0)")
    A("s_barrier")
    for w in range(7): A(f"ds_read_b64 v[{32+2*w}:{33+2*w}], v9 offset:{8192+64*w}")
    A("s_waitcnt lgkmcnt(0)")
    for w in range(1, 7):
        A(f"v_add_f32 v32, v32, v{32+2*w}")
        A(f"v_add_f32 v33, v33, v{33+2*w}")
    A(f"v_mul_f32 v32, {hex(f2u(1.0/448))}, v32")
    A(f"v_mul_f32 v33, {hex(f2u(1.0/448))}, v33")
    A("v_fma_f32 v33, -v32, v32, v33")
    A("v_max_f32 v33, 0, v33")
    A(f"v_add_f32 v34, {hex(f2u(1e-5))}, v33")
    A("v_rsq_f32 v34, v34")
    A("s_nop 0")
    A("v_mul_f32 v35, v34, v34")
    A("v_mul_f32 v35, v35, v33")
    A(f"v_add_f32 v35, {hex(f2u(1e-5))}, v35")
    A("v_rsq_f32 v35, v35")
    A("s_nop 0")
    A("v_mul_f32 v34, v34, v35")
    for k in range(8):
        A(f"v_sub_f32 v{16+k}, v{16+k}, v32")
        A(f"v_mul_f32 v{16+k}, v{16+k}, v34")
    for k in range(4): A(f"v_cvt_pk_bf16_f32 v{36+k}, v{16+2*k}, v{17+2*k}")
    A("v_lshlrev_b32 v9, 9, v6")
    A("v_lshl_add_u32 v9, v5, 6, v9")
    A("v_lshl_add_u32 v9, v4, 1, v9")
    for k in range(4):
        off = (k >> 1)*256 + (k & 1)*32
        A(f"ds_write_b16 v9, v{36+k} offset:{off}")
        A(f"ds_write_b16_d16_hi v9, v{36+k} offset:{off+16}")
    A("v_lshlrev_b32 v9, 4, v0")
    A("v_lshrrev_b32 v26, 4, v0")
    A("v_lshlrev_b32 v26, 10, v26")
    A("v_and_b32 v27, 15, v0")
    A("v_lshl_add_u32 v26, v27, 4, v26")
    A("s_lshr_b32 s24, s2, 2")
    A(f"s_mul_i32 s24, s24, {28*1024}")
    A("s_and_b32 s25, s2, 3")
    A("s_lshl_b32 s25, s25, 8")
    A("s_add_u32 s24, s24, s25")
    A(f"s_add_u32 s24, s24, {WS_HN}")
    A("s_waitcnt lgkmcnt(0)")
    A("s_barrier")
    A("ds_read_b128 v[40:43], v9")
    A("s_waitcnt lgkmcnt(0)")
    A("buffer_store_dwordx4 v[40:43], v26, s[12:15], s24 offen")
    stamp(A, 2, 2, nw=3)
    A("RL_END:")
    kernel_end(A, name, 96, 96)

def gen_mlp(A, second):
    name = "mlp2_kernel" if second else "mlp1_kernel"
    L = "M2" if second else "M1"
    kid = 4 if second else 3
    NS = 14 if second else 16
    WROW = 4096 if second else 3584
    WBYTES = 2048*1792*2
    ACT = WS_U if second else WS_HN
    kernel_begin(A, name)
    A("s_cmp_ge_u32 s2, 224")
    A(f"s_cbranch_scc1 {L}_END")
    A("s_lshr_b32 s21, s2, 3")
    A("s_mul_i32 s22, s21, 37")
    A("s_lshr_b32 s22, s22, 8")
    A("s_mul_i32 s23, s22, 7")
    A("s_sub_u32 s23, s21, s23")
    A("s_lshl_b32 s22, s22, 3")
    A("s_and_b32 s21, s2, 7")
    A("s_add_u32 s22, s22, s21")
    if not second:
        A("s_cmp_ge_u32 s22, 28")
        A(f"s_cbranch_scc1 {L}_END")
    A(f"s_load_dwordx4 s[28:31], s[0:1], {KA['w2'] if second else KA['w1']}")
    A(f"s_load_dwordx2 s[32:33], s[0:1], {KA['ws']}")
    if second: A(f"s_load_dwordx2 s[34:35], s[0:1], {KA['out']}")
    A("v_lshrrev_b32 v2, 6, v0")
    A("v_and_b32 v1, 63, v0")
    A("v_readfirstlane_b32 s20, v2")
    A("v_lshlrev_b32 v4, 4, v1")
    A("v_lshrrev_b32 v2, 3, v1")
    A(f"v_mul_u32_u24 v5, {WROW}, v2")
    A("v_and_b32 v2, 1, v1")
    A("v_lshl_add_u32 v5, v2, 4, v5")
    A("v_bfe_u32 v2, v1, 1, 2")
    A(f"v_bfe_u32 v3, v1, 4, {2 if second else 1}")
    A("v_xor_b32 v2, v2, v3")
    A("v_xor_b32 v3, 2, v2" if not second else "v_mov_b32 v3, v2")
    A("v_lshl_add_u32 v6, v3, 5, v5")
    A("v_lshl_add_u32 v5, v2, 5, v5")
    A(f"v_add_u32 v6, {8*WROW - 1024}, v6")
    A(f"v_add_u32 v7, {16*WROW - 2048}, v5")
    A(f"v_add_u32 v8, {16*WROW - 2048}, v6")
    A(f"s_mul_i32 s24, s20, {NS*32*WROW}")
    A("s_lshl_b32 s25, s22, 7")
    A("s_add_u32 s24, s24, s25")
    A(f"s_mul_i32 s25, s20, {NS*28*1024}")
    A("s_lshl_b32 s26, s23, 12")
    A("s_add_u32 s25, s25, s26")
    A(f"s_add_u32 s25, s25, {ACT}")
    A("s_lshl_b32 s27, s20, 15")
    A("s_waitcnt lgkmcnt(0)")
    srd(A, 4, 28, WBYTES)
    srd(A, 12, 32, WS_SIZE)
    srd(A, 8, 30, (2048 if second else 1792)*2)
    if second: srd(A, 16, 34, 2048*448*2)
    stamp(A, kid, 0)
    DEPTH = 7
    def issue(s_):
        A(f"s_add_u32 m0, s27, {(s_ % 8)*4096}")
        for t in range(4):
            A(f"buffer_load_dwordx4 {ar(16*(s_ % 8) + 4*t, 4)}, v4, s[12:15], s25 offen offset:{t*1024}")
        for i in range(4):
            A(f"buffer_load_dwordx4 v{5+i}, s[4:7], s24 offen offset:{i*1024} lds")
        A(f";@mark {L}s{s_}")
        A(f"s_add_u32 s24, s24, {32*WROW}")
        A(f"s_add_u32 s25, s25, {28*1024}")
    for s_ in range(DEPTH): issue(s_)
    A("v_lshrrev_b32 v3, 4, v1")
    A("v_and_b32 v2, 15, v1")
    if not second:
        A("v_lshlrev_b32 v9, 3, v3")
        A("s_lshl_b32 s26, s22, 7")
        for t in range(4): A(f"buffer_load_dwordx2 v[{96+2*t}:{97+2*t}], v9, s[8:11], s26 offen offset:{32*t}")
        A("v_lshrrev_b32 v9, 2, v2")
        A("v_lshlrev_b32 v9, 10, v9")
        A("v_lshl_add_u32 v9, v3, 8, v9")
        A("v_and_b32 v10, 3, v2")
        A("v_lshl_add_u32 v9, v10, 4, v9")
        A("s_lshl_b32 s26, s20, 6")
        A("v_add_u32 v9, s26, v9")
        A(f"s_mul_i32 s26, s22, {2*28*1024}")
        A("s_lshl_b32 s21, s23, 12")
        A("s_add_u32 s26, s26, s21")
        A(f"s_add_u32 s26, s26, {WS_U}")
    else:
        A("s_lshl_b32 s26, s22, 6")
        A("s_lshl_b32 s21, s20, 4")
        A("s_add_u32 s26, s26, s21")
        A("v_add_u32 v10, s26, v2")
        A("v_lshlrev_b32 v11, 1, v10")
        A("buffer_load_ushort v104, v11, s[8:11], 0 offen")
        A("v_mul_u32_u24 v9, 896, v10")
        A("v_lshl_add_u32 v9, v3, 5, v9")
        A("s_lshl_b32 s26, s23, 7")
        A("v_add_u32 v9, s26, v9")
        A(f"s_mov_b32 s26, {WS_H}")
        A("buffer_load_dwordx4 v[96:99], v9, s[12:15], s26 offen")
        A("buffer_load_dwordx4 v[100:103], v9, s[12:15], s26 offen offset:16")
    if second:
        A("v_lshrrev_b32 v2, 2, v1")
        A("v_bfe_u32 v3, v2, 1, 2")
        HH = 2048
    else:
        A("v_bfe_u32 v10, v1, 2, 2")
        A("v_lshl_add_u32 v2, v3, 3, v10")
        A("v_and_b32 v3, 1, v3")
        A("v_lshlrev_b32 v3, 1, v3")
        A("v_lshrrev_b32 v10, 1, v10")
        A("v_or_b32 v3, v3, v10")
        HH = 512
    A("v_lshlrev_b32 v2, 7, v2")
    A("v_and_b32 v10, 3, v1")
    A("v_lshl_add_u32 v2, v10, 3, v2")
    A("v_add_u32 v2, s27, v2")
    for k in range(4):
        A(f"v_xor_b32 v10, {k}, v3")
        A(f"v_lshl_add_u32 v{12+k}, v10, 5, v2")
    ACC = 32
    def wf(s_, t): return 128 + 16*(s_ % 2) + 4*t
    def reads(s_):
        A(f"s_waitcnt vmcnt(@{L}s{s_}+0)")
        for t in range(4):
            for hh in range(2):
                A(f"ds_read_b64_tr_b16 {ar(wf(s_, t) + 2*hh, 2)}, v{12+t} offset:{(s_ % 8)*4096 + hh*HH}")
    reads(0)
    stamp(A, kid, 1)
    for s_ in range(NS):
        if s_ + 1 < NS:
            reads(s_ + 1)
            A("s_waitcnt lgkmcnt(8)")
        else:
            A("s_waitcnt lgkmcnt(0)")
        for wt in range(4):
            ts = range(4) if wt % 2 == 0 else range(3, -1, -1)
            for at in ts:
                own, oth = (wt, at) if second else (at, wt)
                d = vr(ACC + 16*own + 4*oth, 4)
                w_ = ar(wf(s_, wt), 4); a_ = ar(16*(s_ % 8) + 4*at, 4)
                x, y = (a_, w_) if second else (w_, a_)
                A(f"{MF} {d}, {x}, {y}, {'0' if s_ == 0 else d}")
        if s_ + DEPTH < NS: issue(s_ + DEPTH)
    stamp(A, kid, 2)
    A("v_add_u32 v10, s27, v4")
    A("s_nop 7")
    for t in range(16): A(f"ds_write_b128 v10, {vr(ACC + 4*t, 4)} offset:{t*1024}")
    A("s_lshl_b32 s21, s20, 12")
    A("v_add_u32 v10, s21, v4")
    A("v_add_u32 v11, 0x10000, v10")
    A("s_waitcnt lgkmcnt(0)")
    A("s_barrier")
    for w in range(4):
        for t in range(4):
            A(f"ds_read_b128 {vr(ACC + 16*w + 4*t, 4)}, v{10 + (w >> 1)} offset:{(w & 1)*32768 + t*1024}")
    A("s_waitcnt lgkmcnt(8)")
    for r in range(16): A(f"v_add_f32 v{ACC+r}, v{ACC+r}, v{ACC+16+r}")
    A("s_waitcnt lgkmcnt(0)")
    for r in range(16): A(f"v_add_f32 v{ACC+32+r}, v{ACC+32+r}, v{ACC+48+r}")
    for r in range(16): A(f"v_add_f32 v{ACC+r}, v{ACC+r}, v{ACC+32+r}")
    if not second:
        c1 = -2.0*math.sqrt(2/math.pi)*math.log2(math.e); c3 = c1*0.044715
        A(f"s_mov_b32 s21, {hex(f2u(c3))}")
        A(f"v_mov_b32 v16, {hex(f2u(c1))}")
        for k in range(8):
            A(f"v_lshlrev_b32 v{48+2*k}, 16, v{96+k}")
            A(f"v_and_b32 v{49+2*k}, 0xffff0000, v{96+k}")
        for r in range(16): A(f"v_add_f32 v{ACC+r}, v{ACC+r}, v{48+r}")
        for r in range(16): A(f"v_mul_f32 v{48+r}, v{ACC+r}, v{ACC+r}")
        for r in range(16): A(f"v_fma_f32 v{48+r}, v{48+r}, s21, v16")
        for r in range(16): A(f"v_mul_f32 v{48+r}, v{48+r}, v{ACC+r}")
        for r in range(16): A(f"v_exp_f32 v{48+r}, v{48+r}")
        for r in range(16): A(f"v_add_f32 v{48+r}, 1.0, v{48+r}")
        for r in range(16): A(f"v_rcp_f32 v{48+r}, v{48+r}")
        for r in range(16): A(f"v_mul_f32 v{ACC+r}, v{ACC+r}, v{48+r}")
        for k in range(8): A(f"v_cvt_pk_bf16_f32 v{64+k}, v{ACC+2*k}, v{ACC+2*k+1}")
        A("buffer_store_dwordx4 v[64:67], v9, s[12:15], s26 offen")
        A(f"s_add_u32 s26, s26, {28*1024}")
        A("buffer_store_dwordx4 v[68:71], v9, s[12:15], s26 offen")
    else:
        A("v_lshlrev_b32 v104, 16, v104")
        for k in range(8):
            A(f"v_lshlrev_b32 v{48+2*k}, 16, v{96+k}")
            A(f"v_and_b32 v{49+2*k}, 0xffff0000, v{96+k}")
        for r in range(16): A(f"v_add_f32 v{ACC+r}, v{ACC+r}, v104")
        for r in range(16): A(f"v_add_f32 v{ACC+r}, v{ACC+r}, v{48+r}")
        for k in range(8): A(f"v_cvt_pk_bf16_f32 v{64+k}, v{ACC+2*k}, v{ACC+2*k+1}")
        A("buffer_store_dwordx4 v[64:67], v9, s[16:19], 0 offen")
        A("buffer_store_dwordx4 v[68:71], v9, s[16:19], 0 offen offset:16")
    stamp(A, kid, 3)
    A(f"{L}_END:")
    kernel_end(A, name, 112 + 160, 112)

def check_tail(g, l):
    import torch
    fetch, bf, cmp, unfrag, ws = g["fetch"], g["bf"], g["cmp"], g["unfrag"], l["ws"]
    cmp("h", bf(fetch(ws, WS_H, 2048*896)).reshape(2048, 448), l["h"])
    hf = bf(fetch(ws, WS_HN, 2048*896)).reshape(64, 28, 4, 16, 8)
    cmp("hn", hf.permute(0, 2, 4, 1, 3).reshape(2048, 448), l["hn"])
    f, r = l["f"], l["r"]
    u = torch.nn.functional.gelu(r(l["hn"]).T @ f["B_w1"] + f["B_b1"], approximate="tanh")
    uf = unfrag(bf(fetch(ws, WS_U, 448*1792*2)).reshape(56, 7, 4, 64, 8), 0)
    uf = uf.reshape(56, 7, 4, 4, 4, 32).permute(1, 3, 2, 4, 0, 5).reshape(448, 1792)
    cmp("u", uf, u)

HEADER = open("sequential_preLN__compressed_kv_cla__mixer_token_mlp__prompt.s.ref").read().split("; Override launch")[0]

def build(kernels):
    A = Asm()
    launches = {
        "kv": "; @launch kernel=kvproj_kernel grid=(256,1,1) block=(256,1,1) lds=131072",
        "attn": "; @launch kernel=attn_kernel grid=(256,1,1) block=(256,1,1) lds=131072",
        "red": "; @launch kernel=redln_kernel grid=(256,1,1) block=(448,1,1) lds=9216",
        "m1": "; @launch kernel=mlp1_kernel grid=(224,1,1) block=(256,1,1) lds=131072",
        "m2": "; @launch kernel=mlp2_kernel grid=(224,1,1) block=(256,1,1) lds=131072",
    }
    gens = {"kv": gen_kv, "attn": gen_attn, "red": gen_red, "m1": lambda A: gen_mlp(A, False), "m2": lambda A: gen_mlp(A, True)}
    head = HEADER + "\n".join(launches[k] for k in kernels) + "\n"
    A('.amdgcn_target "amdgcn-amd-amdhsa--gfx950"')
    for k in kernels: gens[k](A)
    return head + A.text()

if __name__ == "__main__":
    for a in sys.argv[2:]:
        k, v = a.split("=")
        OPT[k] = {"True": True, "False": False}.get(v, v)
    open(sys.argv[1], "w").write(build(OPT["kernels"].split(",")))
```

```python
import sys

MF = "v_mfma_f32_16x16x32_bf16"

def vr(b, n=1, p="v"):
    return f"{p}{b}" if n == 1 else f"{p}[{b}:{b+n-1}]"
def ar(b, n=1): return vr(b, n, "a")
def sr(b, n=1): return vr(b, n, "s")

class Asm:
    def __init__(self):
        self.L = []
        self.uid = 0
    def __call__(self, s=""):
        for l in s.split("\n"):
            l = l.strip()
            if l: self.L.append(l)
    def label(self, base):
        self.uid += 1
        return f"{base}_{self.uid}"
    def resolve(self):
        import re
        for i, l in enumerate(self.L):
            m = re.search(r"vmcnt\(@(\w+)\+(\d+)\)", l)
            if not m: continue
            cnt = int(m.group(2)); j = i - 1
            while self.L[j] != ";@mark " + m.group(1):
                if self.L[j].startswith("buffer_"): cnt += 1
                j -= 1
                assert j >= 0, l
            self.L[i] = l.replace(m.group(0), f"vmcnt({min(cnt, 63)})")
        self.L = [l for l in self.L if not l.startswith(";@mark")]
    def text(self):
        self.resolve()
        out = []
        for l in self.L:
            if l.endswith(":") or l.startswith(".") or l.startswith(";"):
                out.append(l)
            else:
                out.append("  " + l)
        return "\n".join(out) + "\n"

class It:
    def __init__(self, text, kind, lo=0, rid=None, gapafter=0, hi=None, deps=None):
        self.text, self.kind, self.lo, self.rid, self.gapafter = text, kind, lo, rid, gapafter
        self.hi = hi
        self.deps = list(deps) if deps else []
        self.pos = None

class Free(list):
    pass

class Gap:
    def __init__(self):
        self.s, self.d, self.v = [], [], []
        self.nv = 0
        self.alone = False
        self.novalu = False
        self.onlym = False
    def fits(self, k):
        if self.alone: return False
        if self.onlym and k != "m": return False
        ns = len(self.s)
        if k == "m": return ns == 0 and self.nv == 0
        if k == "s": return ns + self.nv < 3
        if k == "d": return self.nv < 2 and ns + self.nv < 3
        if k == "v": return (not self.novalu) and self.nv < 2 and ns + self.nv < 3
        if k == "x": return (not self.novalu) and self.nv == 0 and ns <= 1
        raise ValueError(k)
    def add(self, it):
        k = it.kind
        if k == "m": self.alone = True; self.v.append(it)
        elif k == "s": self.s.append(it)
        elif k == "d": self.d.append(it); self.nv += 1
        elif k == "v": self.v.append(it); self.nv += 1
        elif k == "x": self.v.append(it); self.nv += 2

def sched(A, mf, fixed, streams, carry=(), lat=7, name="", pairnop=True, reserve=(), overnop=0, overside=(), overevery=10):
    n = len(mf)
    G = [Gap() for _ in range(n)]
    for g in reserve: G[g].onlym = True
    for g, it in fixed:
        if it.kind == "b":
            G[g].s.append(it); G[g].novalu = True
            if g > 0: G[g-1].novalu = True
            continue
        if not G[g].fits(it.kind):
            print(f"[sched {name}] fixed item does not fit gap {g}: {it.text}", file=sys.stderr)
        G[g].add(it)
    reads = list(carry)
    for g in range(n):
        for it in G[g].d:
            reads.append((it.rid, g))
    idx = {}
    for i, (rid, g) in enumerate(reads):
        idx.setdefault(rid, []).append(i)
    done = -1
    pre = []
    for m in range(n):
        need = -1
        for rid in mf[m][1]:
            cand = [i for i in idx.get(rid, []) if reads[i][1] < m]
            assert cand, (name, m, rid)
            need = max(need, max(cand))
        if need <= done: continue
        g = m - 1
        while g >= 0 and not G[g].fits("s"): g -= 1
        issued = sum(1 for (_, gg) in reads if gg < g) if g >= 0 else len(carry)
        assert need < issued, (name, "read issued too late", m, mf[m], reads[need], g)
        cover = need
        while cover + 1 < issued and reads[cover+1][1] <= g - lat: cover += 1
        cnt = min(15, issued - cover - 1)
        cover = issued - cnt - 1
        w = It(f"s_waitcnt lgkmcnt({cnt})", "s")
        if g >= 0: G[g].s.insert(0, w)
        else: pre.append(w)
        if g - reads[need][1] < 4 and g >= 0:
            print(f"[sched {name}] short lds lead at mfma {m}: {g - reads[need][1]}", file=sys.stderr)
        done = cover
    pool = []
    for st in streams:
        free = isinstance(st, Free)
        prev = None
        for it in st:
            if prev is not None and not free: it.deps.append((prev, prev.gapafter))
            prev = it
            pool.append(it)
    for g in range(n):
        progress = True
        while progress:
            progress = False
            for it in pool:
                if it.pos is not None or it.lo > g: continue
                if any(d.pos is None or d.pos + k > g for d, k in it.deps): continue
                if not G[g].fits(it.kind): continue
                if it.kind == "s" and G[g].s and not (it.hi is not None and it.hi <= g): continue
                if it.kind == "s" and any(d.pos == g and d.kind != "s" for d, k in it.deps): continue
                G[g].add(it); it.pos = g; progress = True
                break
    over = [it for it in pool if it.pos is None]
    for it in pool:
        if it.hi is not None:
            assert it.pos is not None and it.pos <= it.hi, (name, "deadline missed", it.text, it.pos, it.hi)
    for w in pre: A(w.text)
    for m in range(n):
        A(mf[m][0])
        g = G[m]
        if pairnop and len(g.d) == 2 and not g.s: A("s_nop 0")
        for it in g.s + g.d + g.v: A(it.text)
    if over:
        print(f"[sched {name}] {len(over)} items overflow", file=sys.stderr)
        if overnop: A(f"s_nop {overnop}")
        left = list(over)
        while left:
            for it in left:
                if all(d.pos is not None for d, k in it.deps):
                    A(it.text); it.pos = n; left.remove(it)
                    if it.kind == "x" or it.gapafter: A("s_nop 0")
                    if overside and len(left) % overevery == 0: A(overside.pop(0))
                    break
    for t in overside: A(t)
    return [(rid, g - n) for (rid, g) in reads[done+1:]]

def kernel_begin(A, name):
    A(".text")
    A(f".globl {name}")
    A(".p2align 8")
    A(f".type {name},@function")
    A(f"{name}:")

def kernel_end(A, name, nvgpr, accoff, nsgpr=96):
    A("s_endpgm")
    A('.section .rodata,"a"')
    A(".p2align 6")
    A(f".amdhsa_kernel {name}")
    A(f".amdhsa_next_free_vgpr {nvgpr}")
    A(f".amdhsa_next_free_sgpr {nsgpr}")
    A(f".amdhsa_accum_offset {accoff}")
    A(".amdhsa_group_segment_fixed_size 0")
    A(".amdhsa_kernarg_size 112")
    A(".amdhsa_user_sgpr_count 2")
    A(".amdhsa_user_sgpr_kernarg_segment_ptr 1")
    A(".amdhsa_system_sgpr_workgroup_id_x 1")
    A(".end_amdhsa_kernel")

def srd(A, d, ptr, nbytes):
    A(f"s_mov_b32 s{d}, s{ptr}")
    A(f"s_mov_b32 s{d+1}, s{ptr+1}")
    A(f"s_mov_b32 s{d+2}, {nbytes}")
    A(f"s_mov_b32 s{d+3}, 0x20000")

def allsum16(A, regs):
    for pat in ("quad_perm:[1,0,3,2]", "quad_perm:[2,3,0,1]", "row_half_mirror", "row_mirror"):
        if len(regs) < 3: A("s_nop 1")
        for r in regs:
            A(f"v_add_f32_dpp v{r}, v{r}, v{r} {pat} row_mask:0xf bank_mask:0xf")

def crossrow(A, op, regs, tmps):
    for sw in ("v_permlane16_swap_b32", "v_permlane32_swap_b32"):
        for r, t in zip(regs, tmps): A(f"v_mov_b32 v{t}, v{r}")
        A("s_nop 1")
        for r, t in zip(regs, tmps): A(f"{sw} v{r}, v{t}")
        A("s_nop 0")
        for r, t in zip(regs, tmps): A(f"{op} v{r}, v{r}, v{t}")
```

```python
import sys, math, struct
from asmlib import *

WS_KV   = 0x0000000
WS_XN   = 0x2000000
WS_PO   = 0x2200000
WS_LSE  = 0x2A00000
WS_FLAG = 0x2A80000
WS_OP   = 0x2B00000
WS_H    = 0x4700000
WS_HN   = 0x4900000
WS_U    = 0x4B00000
WS_STAMP= 0x5000000
WS_SIZE = 0x10000000
KA = dict(x=0, ckv=8, wq=16, wuk=24, wuv=32, wo=40, bx=48, w1=56, b1=64, w2=72, b2=80, out=88, dbg=96, ws=104)

def f2u(f): return struct.unpack("<I", struct.pack("<f", f))[0]
QSCALE = math.log2(math.e) / 16.0

OPT = dict(stamp=False, st_kv="sc1", st_op="sc1", nh0=13, pf=True, lead=4, pfcode=True, pfown=True, lit=True, novm=False, nobar=False, lat=7, dg="3,7,13,17,23,27,33,37", noexp=False, nodma=False, kernels="kv,attn,red,m1,m2")

def stamp(A, kid, slot, ws=12, wave=20, nw=2):
    if not OPT["stamp"]: return
    A("s_memrealtime s[90:91]")
    A("s_memtime s[92:93]")
    A("s_waitcnt lgkmcnt(0)")
    A(f"s_lshl_b32 s94, s2, 2")
    A(f"s_and_b32 s95, s{wave}, 3")
    A(f"s_add_u32 s94, s94, s95")
    A(f"s_lshl_b32 s94, s94, 7")
    A(f"s_add_u32 s94, s94, {WS_STAMP + kid*0x40000 + slot*8}")
    A("v_mov_b32 v2, s90")
    A("v_mov_b32 v3, s92")
    A("s_mov_b64 s[88:89], exec")
    A("s_mov_b64 exec, 1")
    A(f"buffer_store_dwordx2 v[2:3], off, s[{ws}:{ws+3}], s94")
    A("s_mov_b64 exec, s[88:89]")
    A("s_nop 1")

def touch_code(A, start, end, nthreads=256, vtmp=2, vdst=3, sb=68):
    if not OPT["pfcode"]: return
    l = A.label("PC")
    A(f"s_getpc_b64 s[{sb}:{sb+1}]")
    A(f"{l}:")
    A(f"s_mov_b32 s{sb+2}, {end}-{l}")
    A(f"s_mov_b32 s{sb+3}, 0x20000")
    A(f"v_lshlrev_b32 v{vtmp}, 7, v0")
    A(f"buffer_load_dword v{vdst}, v{vtmp}, s[{sb}:{sb+3}], 0 offen")
    if start:
        A(f"v_add_u32 v{vtmp}, {nthreads*128}, v{vtmp}")
        A(f"buffer_load_dword v{vdst}, v{vtmp}, s[{sb}:{sb+3}], 0 offen")

def gen_kv(A):
    name = "kvproj_kernel"
    kernel_begin(A, name)
    A("s_cmp_ge_u32 s2, 256")
    A("s_cbranch_scc1 KV_END")
    touch_code(A, 0, "KV_END", vtmp=29, vdst=30)
    A("s_load_dwordx4 s[28:31], s[0:1], 0")
    A("s_load_dwordx4 s[32:35], s[0:1], 24")
    A(f"s_load_dwordx2 s[36:37], s[0:1], {KA['ws']}")
    A(f"s_load_dwordx2 s[46:47], s[0:1], {KA['wq']}")
    A(f"s_load_dwordx2 s[48:49], s[0:1], {KA['wo']}")
    A(f"s_load_dwordx2 s[50:51], s[0:1], {KA['w1']}")
    A(f"s_load_dwordx2 s[54:55], s[0:1], {KA['w2']}")
    A("v_lshrrev_b32 v2, 6, v0")
    A("v_and_b32 v1, 63, v0")
    A("v_readfirstlane_b32 s20, v2")
    A("s_and_b32 s21, s2, 7")
    A("s_lshl_b32 s21, s21, 1")
    A("s_bfe_u32 s22, s2, 0x10003")
    A("s_add_u32 s21, s21, s22")
    A("s_bfe_u32 s22, s2, 0x10004")
    A("s_lshr_b32 s23, s2, 5")
    A("s_waitcnt lgkmcnt(0)")
    srd(A, 4, 30, 2048*1024*2)
    A("s_cmp_eq_u32 s22, 0")
    A("s_cselect_b32 s8, s32, s34")
    A("s_cselect_b32 s9, s33, s35")
    A("s_mov_b64 s[64:65], s[32:33]")
    A("s_mov_b64 s[66:67], s[34:35]")
    A(f"s_mov_b32 s10, {1024*4096*2}")
    A("s_mov_b32 s11, 0x20000")
    srd(A, 12, 36, WS_SIZE)
    srd(A, 16, 28, 2048*448*2)
    stamp(A, 0, 0)
    A("s_lshl_b32 s28, s2, 3")
    A("s_lshl_b32 s29, s20, 1")
    A("s_add_u32 s28, s28, s29")
    A("s_mul_i32 s29, s28, 896")
    A("v_lshrrev_b32 v2, 2, v1")
    A("v_and_b32 v3, 3, v1")
    A("v_lshlrev_b32 v4, 6, v2")
    A("v_lshl_add_u32 v4, v3, 3, v4")
    A("v_cmp_gt_u32 vcc, 56, v1")
    A("v_mov_b32 v5, 0x7fff0000")
    A("s_nop 0")
    A("v_cndmask_b32 v4, v5, v4, vcc")
    A("buffer_load_dwordx2 v[32:33], v4, s[16:19], s29 offen")
    A("buffer_load_dwordx2 v[34:35], v4, s[16:19], s29 offen offset:32")
    A("buffer_load_dwordx2 v[36:37], v4, s[16:19], s29 offen offset:896")
    A("buffer_load_dwordx2 v[38:39], v4, s[16:19], s29 offen offset:928")
    A("s_lshr_b32 s30, s28, 4")
    A("s_mul_i32 s30, s30, 14336")
    A("s_and_b32 s31, s28, 15")
    A("s_lshl_b32 s31, s31, 4")
    A("s_add_u32 s30, s30, s31")
    A(f"s_add_u32 s30, s30, {WS_XN}")
    A("v_lshlrev_b32 v6, 10, v2")
    A("v_lshl_add_u32 v6, v3, 8, v6")
    A("v_cndmask_b32 v6, v5, v6, vcc")
    A("v_lshrrev_b32 v2, 3, v1")
    A("v_lshrrev_b32 v3, 4, v1")
    A("v_and_b32 v4, 7, v1")
    A("s_lshl_b32 s31, s23, 8")
    A("s_lshr_b32 s32, s20, 1")
    A("s_lshl_b32 s32, s32, 7")
    A("s_add_u32 s31, s31, s32")
    A("s_and_b32 s32, s20, 1")
    A("s_lshl_b32 s32, s32, 5")
    A("s_add_u32 s31, s31, s32")
    A("v_add_u32 v2, s31, v2")
    A("v_lshlrev_b32 v2, 11, v2")
    for i in range(4):
        A(f"v_xor_b32 v5, v4, v3")
        if i & 1: A("v_xor_b32 v5, 4, v5")
        A(f"v_lshl_add_u32 v{8+i}, v5, 4, v2")
        if i: A(f"v_add_u32 v{8+i}, {i*(8*2048-1024)}, v{8+i}")
    A("s_lshl_b32 s31, s20, 4")
    A("v_add_u32 v2, s31, v3")
    A("v_lshlrev_b32 v2, 13, v2")
    A("s_lshl_b32 s31, s21, 9")
    A("v_add_u32 v2, s31, v2")
    A("v_and_b32 v4, 1, v1")
    A("v_lshl_add_u32 v2, v4, 4, v2")
    A("v_bfe_u32 v4, v1, 1, 3")
    A("v_xor_b32 v4, v4, v3")
    for i in range(4):
        if i == 2: A("v_xor_b32 v4, 4, v4")
        A("v_lshrrev_b32 v5, 2, v4")
        A("v_lshl_add_u32 v7, v5, 8, v2")
        A("v_and_b32 v5, 3, v4")
        A(f"v_lshl_add_u32 v{12+i}, v5, 5, v7")
        if i: A(f"v_add_u32 v{12+i}, {i*(4*8192-1024)}, v{12+i}")
    A("s_lshl_b32 s27, s20, 12")
    A("s_mov_b32 s24, 0")
    A("s_mov_b32 s25, 0")
    def dma_c(i): return f"buffer_load_dwordx4 v{8+i}, s[4:7], s24 offen offset:{i*1024} lds"
    def dma_w(i): return f"buffer_load_dwordx4 v{12+i}, s[8:11], s25 offen offset:{i*1024} lds"
    def adv_c(par): return f"s_add_u32 s24, s24, {131072 if par == 0 else (128-131072) & 0xffffffff}"
    def adv_w(par): return f"s_add_u32 s25, s25, {128 if par == 0 else 524288-128}"
    for p in range(4):
        A(f"s_add_u32 m0, s27, {p*32768}")
        A("s_nop 0")
        for i in range(4): A(dma_c(i))
        A(f"s_add_u32 m0, s27, {p*32768+16384}")
        A(adv_c(p & 1))
        for i in range(4): A(dma_w(i))
        A(adv_w(p & 1))
    npf = 0
    A("v_and_b32 v2, 15, v1")
    A("s_lshr_b32 s31, s20, 1")
    A("s_lshl_b32 s31, s31, 13")
    A("v_lshlrev_b32 v4, 7, v2")
    A("v_add_u32 v4, s31, v4")
    A("v_lshrrev_b32 v5, 1, v2")
    A("v_xor_b32 v5, v5, v3")
    A("v_lshl_add_u32 v16, v5, 4, v4")
    A("v_xor_b32 v17, 64, v16")
    A("v_add_u32 v18, 0x10000, v16")
    A("v_add_u32 v19, 0x10000, v17")
    A("v_bfe_u32 v4, v1, 2, 2")
    A("v_lshl_add_u32 v5, v3, 3, v4")
    A("v_lshlrev_b32 v5, 8, v5")
    A("v_and_b32 v7, 3, v1")
    A("v_lshl_add_u32 v5, v7, 3, v5")
    A("v_add_u32 v5, 16384, v5")
    A("v_and_b32 v7, 1, v3")
    A("v_lshl_add_u32 v4, v7, 2, v4")
    A("s_and_b32 s31, s20, 1")
    A("s_lshl_b32 s31, s31, 2")
    A("v_xor_b32 v4, s31, v4")
    for nt in range(4):
        A(f"v_xor_b32 v7, {nt}, v4")
        A(f"v_lshl_add_u32 v{20+nt}, v7, 5, v5")
        A(f"v_add_u32 v{24+nt}, 0x10000, v{20+nt}")
    A("s_lshl_b32 s31, s21, 21")
    A("s_lshl_b32 s32, s23, 18")
    A("s_add_u32 s31, s31, s32")
    A("s_lshr_b32 s32, s20, 1")
    A("s_lshl_b32 s32, s32, 17")
    A("s_add_u32 s31, s31, s32")
    A("s_and_b32 s32, s20, 1")
    A("s_lshl_b32 s33, s32, 12")
    A("s_lshl_b32 s32, s32, 14")
    A("s_add_u32 s32, s32, 32768")
    A("s_cmp_eq_u32 s22, 0")
    A("s_cselect_b32 s32, s33, s32")
    A("s_add_u32 s31, s31, s32")
    A("v_lshlrev_b32 v28, 4, v1")
    A("v_add_u32 v28, s31, v28")
    A("v_mov_b32 v2, 0")
    A("s_lshl_b32 s31, s2, 7")
    A(f"s_add_u32 s31, s31, {WS_FLAG}")
    A("v_lshlrev_b32 v3, 2, v1")
    A("v_and_b32 v3, 127, v3")
    A("buffer_store_dword v2, v3, s[12:15], s31 offen")
    for r in range(64, 256): A(f"v_mov_b32 v{r}, 0")
    for r in range(64): A(f"v_accvgpr_write_b32 a{r}, 0")
    A(f"s_waitcnt vmcnt({33+npf})")
    for row in range(2):
        for k in range(4):
            s = 32 + 4*row + k; d = 40 + 8*row + 2*k
            A(f"v_lshlrev_b32 v{d}, 16, v{s}")
            A(f"v_and_b32 v{d+1}, 0xffff0000, v{s}")
    for row in range(2):
        d = 40 + 8*row
        A(f"v_add_f32 v{56+row}, v{d}, v{d+1}")
        A(f"v_mul_f32 v{58+row}, v{d}, v{d}")
        for k in range(1, 8):
            if k > 1: A(f"v_add_f32 v{56+row}, v{56+row}, v{d+k}")
            A(f"v_fmac_f32 v{58+row}, v{d+k}, v{d+k}")
    A("s_nop 1")
    allsum16(A, [56, 57, 58, 59])
    crossrow(A, "v_add_f32", [56, 57, 58, 59], [60, 61, 62, 63])
    A(f"s_mov_b32 s31, {f2u(1.0/448)}")
    for row in range(2):
        A(f"v_mul_f32 v{56+row}, s31, v{56+row}")
        A(f"v_mul_f32 v{58+row}, s31, v{58+row}")
        A(f"v_fma_f32 v{58+row}, -v{56+row}, v{56+row}, v{58+row}")
        A(f"v_max_f32 v{58+row}, 0, v{58+row}")
        A(f"v_add_f32 v{58+row}, {hex(f2u(1e-5))}, v{58+row}")
        A(f"v_rsq_f32 v{58+row}, v{58+row}")
        A("s_nop 0")
        A(f"v_mul_f32 v{58+row}, {hex(f2u(QSCALE))}, v{58+row}")
        d = 40 + 8*row
        for k in range(8):
            A(f"v_sub_f32 v{d+k}, v{d+k}, v{56+row}")
            A(f"v_mul_f32 v{d+k}, v{d+k}, v{58+row}")
        for k in range(4):
            A(f"v_cvt_pk_bf16_f32 v{32+4*row+k}, v{d+2*k}, v{d+2*k+1}")
        A(f"buffer_store_dwordx4 v[{32+4*row}:{35+4*row}], v6, s[12:15], s30 offen offset:{16*row}")
    if OPT["pf"]:
        l = A.label("PC")
        A("s_getpc_b64 s[44:45]")
        A(f"{l}:")
        A("s_lshl_b32 s52, s20, 8")
        A("s_add_u32 s52, s52, s2")
        def pick(d, opts):
            prev = 0
            for k, (lim, ptr, c0) in enumerate(opts):
                A(f"s_add_u32 s53, s52, {(c0 - prev) & 0xffffffff}")
                A("s_lshl_b32 s53, s53, 13")
                t = d if k == 0 else 56
                A(f"s_add_u32 s{t}, s{ptr}, s53")
                A(f"s_addc_u32 s{t+1}, s{ptr+1}, 0")
                if k:
                    A(f"s_cmp_ge_u32 s52, {prev}")
                    A(f"s_cmov_b64 s[{d}:{d+1}], s[56:57]")
                prev = lim
        A("s_bitcmp1_b32 s52, 0")
        A("s_cselect_b64 s[58:59], s[66:67], s[64:65]")
        A("s_lshr_b32 s53, s52, 1")
        A("s_lshl_b32 s53, s53, 13")
        A("s_add_u32 s58, s58, s53")
        A("s_addc_u32 s59, s59, 0")
        pick(70, [(512, 4, 0)])
        A("s_cmp_ge_u32 s52, 512")
        A("s_cmov_b64 s[70:71], s[58:59]")
        A(f"s_add_u32 s72, s58, {512*8192}")
        A("s_addc_u32 s73, s59, 0")
        pick(74, [(448, 46, 0), (896, 48, 0), (1024, 50, 0)])
        pick(76, [(768, 50, 128), (1024, 54, 0)])
        pick(78, [(640, 54, 256), (1024, 44, 0)])
        A("s_lshr_b32 s80, s52, 8")
        A("s_add_u32 s81, s80, 4")
        A("s_mul_i32 s82, s52, 7")
        A("s_lshr_b32 s82, s82, 10")
        A("s_add_u32 s83, s82, 15")
        A("s_add_u32 s82, s82, 8")
        A("s_mul_i32 s84, s52, 9")
        A("s_lshr_b32 s84, s84, 10")
        A("s_add_u32 s84, s84, 22")
        A(f"s_cmp_ge_u32 s52, 640+(ALL_END-{l})/8192")
        A("s_cmov_b32 s84, 99")
        if not OPT["pfown"]:
            for q in range(3):
                A(f"s_mov_b64 s[{70+2*q}:{71+2*q}], s[{74+2*q}:{75+2*q}]")
                A(f"s_mov_b32 s{80+q}, s{82+q}")
            A("s_mov_b32 s83, 99")
        A("s_mov_b32 s85, 0")
        A("s_mov_b32 s43, 0x20000")
        A("v_lshlrev_b32 v29, 7, v1")
    C0, C1, WX, WY = 64, 96, 128, 160
    def acc(a, b, i, j):
        q = {(0,0): None, (0,1): 64, (1,1): 128, (1,0): 192}[(a, b)]
        t = 4*(4*i + j)
        return ar(t, 4) if q is None else vr(q + t, 4)
    def rd_c(slot, creg, i, kh):
        base = 16 + kh + (2 if slot >= 2 else 0)
        return f"ds_read_b128 {ar(creg + 4*(2*i+kh), 4)}, v{base} offset:{(slot & 1)*32768 + i*2048}"
    def rd_w(slot, wreg, j, kh, hh):
        base = 20 + j + (4 if slot >= 2 else 0)
        return f"ds_read_b64_tr_b16 {ar(wreg + 4*(2*j+kh) + 2*hh, 2)}, v{base} offset:{(slot & 1)*32768 + kh*8192 + hh*1024}"
    A(f"s_waitcnt vmcnt({27+npf})")
    A("s_barrier")
    for i in range(4):
        for kh in range(2): A(rd_c(0, C0, i, kh))
    for j in range(4):
        for kh in range(2):
            for hh in range(2): A(rd_w(0, WX, j, kh, hh))
    A("s_mov_b32 s26, 7")
    stamp(A, 0, 1)
    A(f"s_waitcnt vmcnt({19+npf}) lgkmcnt(0)")
    A("s_cmp_eq_u32 s22, 0")
    A("s_cbranch_scc0 KV_V")

    def body(isV, last):
        mf = []; fixed = []; streams = []
        def quad(a, b, creg, wreg, tagc, tagw):
            for i in range(4):
                js = range(4) if i % 2 == 0 else range(3, -1, -1)
                for n_, j in enumerate(js):
                    ks = (0, 1) if n_ % 2 == 0 else (1, 0)
                    for kh in ks:
                        c = ar(creg + 4*(2*i+kh), 4); w = ar(wreg + 4*(2*j+kh), 4)
                        x, y = (c, w) if isV else (w, c)
                        d = acc(a, b, i, j)
                        need = []
                        if tagc: need.append((tagc, i, kh))
                        if tagw: need += [(tagw, j, kh, 0), (tagw, j, kh, 1)]
                        mf.append((f"{MF} {d}, {x}, {y}, {d}", need))
        dgaps = [3 + 5*k for k in range(8)]
        def place(base, start, texts):
            g = start
            for rid, t, step in texts:
                while ((g in dgaps or g == 44) and not last): g += 1
                fixed.append((base + g, It(t, "d", rid=rid)))
                g += step
        for e in range(2):
            W0, W1 = (WX, WY) if e == 0 else (WY, WX)
            for half in range(2):
                n = 2*e + half
                base = 64*n
                slot = (n + 1) % 4
                tc, tw = f"c{n}", f"w{n}"
                final = last and n == 3
                if half == 0:
                    quad(0, 0, C0, W0, None, None)
                    quad(0, 1, C0, W1, None, tw)
                    rw = (1, W1); rc = (30, C1)
                else:
                    quad(1, 1, C1, W1, None, None)
                    quad(1, 0, C1, W0, None, None)
                    rc = (1, C0); rw = (32, W1)
                if not final:
                    fixed.append((base, It("s_barrier", "b")))
                    place(base, rw[0], [((tw, j, kh, hh), rd_w(slot, rw[1], j, kh, hh), 1) for j in range(4) for kh in range(2) for hh in range(2)])
                    place(base, rc[0], [((tc, i, kh), rd_c(slot, rc[1], i, kh), 2) for i in range(4) for kh in range(2)])
                if not last:
                    ds_ = n % 4
                    fixed.append((base + dgaps[0] - 1, It(f"s_add_u32 m0, s27, {ds_*32768}", "s")))
                    fixed.append((base + dgaps[4] - 1, It(f"s_add_u32 m0, s27, {ds_*32768+16384}", "s")))
                    for i in range(4):
                        fixed.append((base + dgaps[i], It(dma_c(i), "m")))
                        fixed.append((base + dgaps[4+i], It(dma_w(i), "m")))
                    fixed.append((base + dgaps[3] + 1, It(adv_c(n & 1), "s")))
                    fixed.append((base + dgaps[7] + 1, It(adv_w(n & 1), "s")))
                    vm = 16
                    if OPT["pf"]:
                        vm = 19
                        fixed.append((base + 44, It("buffer_load_dword v30, v29, s[40:43], 0 offen", "m")))
                        pq = [It("s_mov_b64 s[40:41], s[70:71]", "s", base + 40), It("s_cmp_eq_u32 s85, s80", "s"),
                              It("s_cselect_b32 s42, 8192, 0", "s", hi=base + 43)]
                        for q in range(4):
                            pq.append(It(f"s_cmov_b64 s[{70+2*q}:{71+2*q}], s[{72+2*q}:{73+2*q}]", "s"))
                            pq.append(It(f"s_cmov_b32 s{80+q}, s{81+q}", "s"))
                        pq.append(It("s_add_u32 s85, s85, 1", "s", hi=base + 56))
                        streams.append(pq)
                else:
                    vm = ([10, 1, 0, 0] if OPT["pf"] else [8, 0, 0, 0])[n]
                if n < 3 or not last:
                    w = f"s_waitcnt vmcnt({vm}) lgkmcnt(0)" if not (last and n == 2) else "s_waitcnt lgkmcnt(0)"
                    fixed.append((base + 63, It(w, "s")))
        if not last:
            fixed.append((250, It("s_sub_u32 s26, s26, 1", "s")))
            fixed.append((251, It("s_cmp_lg_u32 s26, 0", "s")))
        tq = [0]
        def epi(a, b, lo):
            st = []
            for o in range(4):
                for u in range(2):
                    if isV: tiles = [(2*u, o), (2*u+1, o)]; so = a*65536 + b*8192 + (o >> 1)*4096; imm = (o & 1)*2048 + u*1024
                    else:   tiles = [(o, 2*u), (o, 2*u+1)]; so = a*65536 + o*8192; imm = (2*b + u)*1024
                    t = 32 + 4*(tq[0] % 4); tq[0] += 1
                    st.append(It(f"s_mov_b32 s28, {so}", "s", lo))
                    for k, (i, j) in enumerate(tiles):
                        if (a, b) == (0, 0):
                            s0 = 4*(4*i + j); x = 48 + 4*((2*tq[0] + k) % 4)
                            for r in range(4): st.append(It(f"v_accvgpr_read_b32 v{x+r}, a{s0+r}", "v", lo))
                        else:
                            x = {(0,1): 64, (1,1): 128, (1,0): 192}[(a, b)] + 4*(4*i + j)
                        st.append(It(f"v_cvt_pk_bf16_f32 v{t+2*k}, v{x}, v{x+1}", "v", lo))
                        st.append(It(f"v_cvt_pk_bf16_f32 v{t+2*k+1}, v{x+2}, v{x+3}", "v", lo))
                    st.append(It(f"buffer_store_dwordx4 v[{t}:{t+3}], v28, s[12:15], s28 offen offset:{imm} {OPT['st_kv']}", "m", lo, gapafter=1))
            return st
        if last:
            streams.append(epi(0, 0, 128+32+8) + epi(0, 1, 128+64+8) + epi(1, 1, 128+96+8))
        sched(A, mf, fixed, streams, name=f"kv{isV}{last}")
        if last:
            A("s_nop 7")
            for it in epi(1, 0, 0): A(it.text)

    for isV in (0, 1):
        if isV: A("KV_V:")
        A(".p2align 6")
        A(f"KV_LOOP{isV}:")
        body(isV, False)
        A(f"s_cbranch_scc1 KV_LOOP{isV}")
        stamp(A, 0, 2)
        body(isV, True)
        stamp(A, 0, 3)
        if OPT["stamp"]:
            A("s_waitcnt vmcnt(0)")
            stamp(A, 0, 4)
        if not isV: A("s_endpgm")
    A("KV_END:")
    kernel_end(A, name, 512, 256)


BIG = 2.0**100
PTHR = 2.0**30
def gen_attn(A):
    name = "attn_kernel"
    vOff, vWq, vLin, vWo, vRd, vL16 = 4, 5, 6, 7, 8, 9
    NEGM, LS, TS, TMP, vThr, vFlag = 10, 12, 14, 16, 24, 25
    P = [32, 48]; S = 64; C = 96; O = 128; CTX = 64; AD = 32
    RING, Q, XN = 0, 64, 128
    sOff, sA, sB, sInc, sCnt, sSec, sDs, sRW, sRR, sDel = 24, 25, 26, 27, 28, 29, 30, 31, 32, 33
    sBlk, sT0, sN, sRem, sTile, sThr, sMode = 40, 41, 42, 43, 44, 45, 46
    sBlk1, sT01, sN1, sMode1, sST0, sSN, sKV, sPair, sPend = 48, 49, 50, 51, 52, 53, 54, 55, 56
    sO0, sO1 = 57, 58
    kernel_begin(A, name)
    A("s_cmp_ge_u32 s2, 256")
    A("s_cbranch_scc1 AT_END")
    touch_code(A, 1, "AT_END", vtmp=26, vdst=27)
    A(f"s_load_dwordx2 s[8:9], s[0:1], {KA['wq']}")
    A(f"s_load_dwordx2 s[10:11], s[0:1], {KA['wo']}")
    A(f"s_load_dwordx2 s[16:17], s[0:1], {KA['ws']}")
    A("v_lshrrev_b32 v2, 6, v0")
    A("v_and_b32 v1, 63, v0")
    A("v_readfirstlane_b32 s20, v2")
    A("s_and_b32 s21, s2, 7")
    A("s_lshl_b32 s21, s21, 1")
    A("s_bfe_u32 s22, s2, 0x10003")
    A("s_add_u32 s21, s21, s22")
    A("s_bfe_u32 s22, s2, 0x10004")
    A("s_lshr_b32 s23, s2, 5")
    A("s_lshl_b32 s60, s23, 1")
    A(f"s_sub_i32 s61, {OPT['nh0']}, s60")
    A("s_max_i32 s61, s61, 0")
    A("s_sub_u32 s62, 15, s23")
    A(f"s_lshl_b32 s{sKV}, s21, 21")
    A(f"s_lshl_b32 s{sPair}, s21, 3")
    A(f"s_add_u32 s{sPair}, s{sPair}, s23")
    A(f"s_mov_b32 s{sPend}, 0")
    A("s_cmp_eq_u32 s22, 0")
    A("s_cbranch_scc1 AT_B")
    A(f"s_mov_b32 s{sBlk1}, s62")
    A(f"s_mov_b32 s{sT01}, s61")
    A("s_sub_u32 s63, 32, s60")
    A(f"s_sub_u32 s{sN1}, s63, s61")
    A("s_cmp_eq_u32 s61, 0")
    A(f"s_cselect_b32 s{sMode1}, 0, 2")
    A("s_mov_b32 s61, 0")
    A("s_branch AT_J")
    A("AT_B:")
    A(f"s_mov_b32 s{sBlk1}, s23")
    A(f"s_mov_b32 s{sT01}, 0")
    A(f"s_add_u32 s{sN1}, s60, 2")
    A(f"s_mov_b32 s{sMode1}, 0")
    A("AT_J:")
    A("s_cmp_eq_u32 s61, 0")
    A(f"s_cselect_b32 s{sBlk}, s{sBlk1}, s62")
    A(f"s_cselect_b32 s{sT0}, s{sT01}, 0")
    A(f"s_cselect_b32 s{sN}, s{sN1}, s61")
    A(f"s_cselect_b32 s{sMode}, s{sMode1}, 1")
    A(f"s_cselect_b32 s{sSec}, 4, 0")
    A(f"s_mov_b32 s{sST0}, s{sT0}")
    A(f"s_mov_b32 s{sSN}, s{sN}")
    A(f"v_lshlrev_b32 v{vL16}, 4, v1")
    A("s_lshl_b32 s60, s20, 10")
    A(f"v_add_u32 v{vLin}, s60, v{vL16}")
    A(f"s_mov_b32 s{sRW}, s60")
    A(f"s_mov_b32 s{sRR}, 0")
    A("v_lshrrev_b32 v2, 5, v1")
    A("s_lshl_b32 s60, s20, 1")
    A("v_add_u32 v2, s60, v2")
    A("v_bfe_u32 v3, v1, 1, 4")
    A("v_xor_b32 v3, v3, v2")
    A(f"v_lshlrev_b32 v{vWq}, 13, v2")
    A(f"v_lshl_add_u32 v{vWq}, v3, 5, v{vWq}")
    A("v_and_b32 v3, 1, v1")
    A(f"v_lshl_add_u32 v{vWq}, v3, 4, v{vWq}")
    A("s_lshl_b32 s60, s21, 9")
    A(f"v_add_u32 v{vWq}, s60, v{vWq}")
    A("v_lshrrev_b32 v2, 3, v1")
    A("s_lshl_b32 s60, s21, 8")
    A("s_lshl_b32 s61, s20, 3")
    A("s_add_u32 s60, s60, s61")
    A("v_add_u32 v2, s60, v2")
    A(f"v_mul_u32_u24 v{vWo}, 896, v2")
    A(f"v_lshl_add_u32 v{vWo}, v3, 4, v{vWo}")
    A("v_bfe_u32 v2, v1, 1, 2")
    A("v_lshrrev_b32 v3, 4, v1")
    A("v_xor_b32 v2, v2, v3")
    A(f"v_lshl_add_u32 v{vWo}, v2, 5, v{vWo}")
    A("v_and_b32 v2, 15, v1")
    A("s_lshl_b32 s60, s20, 4")
    A("v_add_u32 v2, s60, v2")
    A("v_lshlrev_b32 v3, 2, v3")
    A(f"v_sub_u32 v{vThr}, v2, v3")
    A("s_waitcnt lgkmcnt(0)")
    srd(A, 12, 16, WS_SIZE)
    srd(A, 4, 8, 448*4096*2)
    stamp(A, 1, 0)
    def set_wq():
        A(f"v_mov_b32 v{vOff}, v{vWq}")
        A(f"s_mov_b32 s{sA}, 0")
        A(f"s_mov_b32 s{sB}, {64*8192}")
        A(f"s_mov_b32 s{sInc}, {128*8192}")
        A(f"s_mov_b32 s{sDs}, {8*8192}")
        A(f"s_mov_b32 s{sCnt}, 6")
    set_wq()
    DMA = f"buffer_load_dwordx4 v{vOff}, s[4:7], s{sOff} offen lds"
    head_s = [f"s_mov_b32 s{sOff}, s{sA}", f"s_mov_b32 m0, s{sRW}", f"s_mov_b32 s{sA}, s{sB}", f"s_add_u32 s{sB}, s{sOff}, s{sInc}"]
    K4096, K32K, KMASK = ("4096", "32768", "0x1ffff") if OPT["lit"] else ("s64", "s65", "s66")
    A("s_mov_b32 s64, 4096")
    A("s_mov_b32 s65, 32768")
    A("s_mov_b32 s66, 0x1ffff")
    step_s = [f"s_add_u32 m0, m0, {K4096}", f"s_add_u32 s{sOff}, s{sOff}, s{sDs}"]
    tail_s = [f"s_add_u32 s{sRW}, s{sRW}, {K32K}", f"s_and_b32 s{sRW}, s{sRW}, {KMASK}"]
    def load_xn(blk):
        A(f"s_lshl_b32 s60, s{blk}, 3")
        A("s_add_u32 s60, s60, s20")
        A("s_mul_i32 s60, s60, 14336")
        A(f"s_add_u32 s60, s60, {WS_XN}")
        A(f"s_add_u32 s61, s60, {4*14336}")
        for ks in range(14):
            for qg in range(2):
                A(f"buffer_load_dwordx4 {ar(XN + 4*(2*ks+qg), 4)}, v{vL16}, s[12:15], s{60+qg} offen offset:{(ks % 4)*1024}")
            if ks % 4 == 3:
                A("s_add_u32 s60, s60, 4096")
                A("s_add_u32 s61, s61, 4096")
    def prime():
        for t in head_s: A(t)
        for i in range(8):
            A(DMA)
            if i < 7:
                for t in step_s: A(t)
        for t in tail_s: A(t)
        A(f"s_sub_u32 s{sCnt}, s{sCnt}, 1")
    prime()
    load_xn(sBlk)
    prime(); prime()
    A("s_waitcnt vmcnt(16)")
    stubs = []
    DG = [int(x) for x in OPT["dg"].split(",")]
    def stream_items(base, fixed, sc, dma=True, mark=None, delta=False, nocheck=False):
        if dma:
            fixed.append((base + 0, It(head_s[0], "s")))
            fixed.append((base + 1, It(head_s[1], "s")))
            fixed.append((base + 1, It(head_s[2], "s")))
            fixed.append((base + 2, It(head_s[3], "s")))
            for i, g in enumerate(DG):
                t = DMA + (f"\n;@mark {mark}" if mark and i == 7 else "")
                fixed.append((base + g, It(t, "m")))
                if i < 7:
                    fixed.append((base + g + 1, It(step_s[0], "s")))
                    fixed.append((base + g + 2, It(step_s[1], "s")))
        if delta:
            sc.append(It(f"s_add_u32 s60, s{sRR}, {K32K}", "s", base + 4))
            sc.append(It(f"s_and_b32 s60, s60, {KMASK}", "s"))
            sc.append(It(f"s_sub_u32 s{sDel}, s60, s{sRR}", "s"))
            sc.append(It(f"s_mov_b32 s{sRR}, s60", "s", hi=base + 21))
        else:
            sc.append(It(f"s_add_u32 s{sRR}, s{sRR}, {K32K}", "s", base + 4))
            sc.append(It(f"s_and_b32 s{sRR}, s{sRR}, {KMASK}", "s", hi=base + 37))
        if dma:
            sc.append(It(tail_s[0], "s", base + 44))
            sc.append(It(tail_s[1], "s", hi=base + 63))
            if not nocheck:
                o, b = A.label("AT_NS"), A.label("AT_NB")
                sc.append(It(f"s_sub_u32 s{sCnt}, s{sCnt}, 1", "s"))
                sc.append(It(f"s_cbranch_scc1 {o}\n{b}:", "s", hi=base + 63))
                stubs.append((o, b))
    def ring(f): return ar(RING + 4*(f % 16), 4)
    def rd128(f): return f"ds_read_b128 {ring(f)}, v{vRd} offset:{f*1024}"
    TAILG = list(range(42, 64, 2)) + [63]
    CARRY128 = lambda tag: [((tag, f), TAILG[f] - 64) for f in range(12)]
    def own128(base, fixed, tag):
        for f in range(12, 32): fixed.append((base + 2*(f-12), It(rd128(f), "d", rid=(tag, f))))
    def tail128(base, fixed, tag, wait="s_waitcnt vmcnt(16)"):
        fixed.append((base + 38, It(f"v_add_u32 v{vRd}, s{sRR}, v{vL16}", "v")))
        fixed.append((base + 40, It(wait if not OPT["novm"] else "s_nop 0", "s")))
        fixed.append((base + 41, It("s_barrier" if not OPT["nobar"] else "s_nop 0", "b")))
        for f in range(12): fixed.append((base + TAILG[f], It(rd128(f), "d", rid=(tag, f))))
    def spread(n, gaps):
        extra = n - len(gaps); out = []; acc = 0.0
        for g in gaps:
            out.append(g); acc += extra / len(gaps)
            if acc >= 0.999: out.append(g); acc -= 1.0
        assert len(out) == n, (len(out), n)
        return out
    busy = set(DG) | {1}
    OWN_TR = spread(40, [g for g in range(0, 40) if g not in busy])
    TAIL_TR = spread(24, list(range(42, 64)))
    def mf_qk(tag, cin):
        mf = []
        for kt in range(4):
            for qg in range(2):
                for T in range(8):
                    d = vr(S + 4*(2*kt+qg), 4)
                    c = vr(cin + 4*(2*kt+qg), 4) if T == 0 else d
                    mf.append((f"{MF} {d}, {ring(8*kt+T)}, {ar(Q + 4*(8*qg+T), 4)}, {c}", [(tag, 8*kt+T)]))
        return mf
    def mf_pv(tag, p):
        mf = []
        for dt in range(16):
            for qg, T in ((0,0),(0,1),(1,1),(1,0)):
                d = vr(O + 4*(2*dt+qg), 4)
                mf.append((f"{MF} {d}, {ring(2*dt+T)}, {vr(p + 4*(2*qg+T), 4)}, {d}", [(tag, 2*dt+T)]))
        return mf
    TSETS = [16, 20, 28]
    def softmax_groups(p, lo_of, first_dep=None):
        exs, posts, last_use = [], [], {}
        gi = 0
        for kt in range(4):
            for qg in range(2):
                t = TSETS[gi % 3]; s0 = S + 4*(2*kt+qg); d = p + 4*(2*qg + kt//2) + 2*(kt % 2)
                ex = []
                for j in range(4):
                    deps = [(last_use[t+j], 0)] if t+j in last_use else []
                    ex.append(It(f"v_exp_f32 v{t+j}, v{s0+j}", "x", lo_of(kt, qg), deps=deps))
                def post(txt, *js):
                    it = It(txt, "v", deps=[(ex[j], 1) for j in js])
                    for j in js: last_use[t+j] = it
                    posts.append(it)
                if kt == 0: post(f"v_add_f32 v{TS+qg}, v{t}, v{t+1}", 0, 1)
                else:
                    post(f"v_add_f32 v{TS+qg}, v{TS+qg}, v{t}", 0)
                    post(f"v_add_f32 v{TS+qg}, v{TS+qg}, v{t+1}", 1)
                post(f"v_cvt_pk_bf16_f32 v{d}, v{t}, v{t+1}", 0, 1)
                post(f"v_add_f32 v{TS+qg}, v{TS+qg}, v{t+2}", 2)
                post(f"v_add_f32 v{TS+qg}, v{TS+qg}, v{t+3}", 3)
                post(f"v_cvt_pk_bf16_f32 v{d+1}, v{t+2}, v{t+3}", 2, 3)
                exs += ex
                gi += 1
        return exs, posts
    def softmax_plain(p):
        exs, posts = softmax_groups(p, lambda kt, qg: 0)
        pi = 0
        for gi in range(9):
            for it in exs[4*gi:4*gi+4]: A(it.text)
            if gi == 8: A("s_nop 0")
            if gi >= 1:
                k = 5 if gi <= 2 else 6
                for it in posts[pi:pi+k]: A(it.text)
                pi += k

    A("AT_SEG:")
    stamp(A, 1, 1)
    A("v_lshrrev_b32 v2, 2, v1")
    A("v_and_b32 v3, 7, v2")
    A("v_lshlrev_b32 v2, 9, v2")
    A("v_and_b32 v26, 3, v1")
    A("v_lshl_add_u32 v2, v26, 3, v2")
    A(f"v_add_u32 v2, s{sRR}, v2")
    for k in range(8):
        A(f"v_xor_b32 v26, {k}, v3")
        A(f"v_lshl_add_u32 v{AD+k}, v26, 5, v2")
    A("s_barrier")
    def rdq(rho):
        f, hh = rho // 2, rho % 2
        dt, kh = f // 2, f % 2
        return f"ds_read_b64_tr_b16 {ar(RING + 4*(f % 16) + 2*hh, 2)}, v{AD + (dt & 7)} offset:{kh*16384 + hh*8192 + (dt >> 3)*256}"
    for rho in range(24): A(rdq(rho))
    mf = []; fixed = []; sc = []; va = []
    for ph in range(7):
        base = 64*ph
        for dt in range(16):
            for qg, kh in ((0,0),(0,1),(1,1),(1,0)):
                d = vr(O + 4*(2*dt+qg), 4)
                first = ph == 0 and (qg, kh) in ((0,0),(1,1))
                f = 2*dt + kh
                mf.append((f"{MF} {d}, {ring(f)}, {ar(XN + 4*(2*(2*ph+kh)+qg), 4)}, {'0' if first else d}", [(ph, 2*f), (ph, 2*f+1)]))
        stream_items(base, fixed, sc, delta=True)
        for i, g in enumerate(OWN_TR): fixed.append((base + g, It(rdq(24+i), "d", rid=(ph, 24+i))))
        if ph < 6:
            if ph < 2:
                l = A.label("AT_W")
                sc.insert(len(sc) - 4, It(f"s_cmp_lg_u32 s{sPend}, 0", "s", base + 36, hi=base + 39))
                fixed.append((base + 40, It(f"s_cbranch_scc1 {l}\ns_waitcnt vmcnt(16)\n{l}:", "s")))
            else:
                fixed.append((base + 40, It("s_waitcnt vmcnt(16)", "s")))
            fixed.append((base + 41, It("s_barrier", "b")))
            for i, g in enumerate(TAIL_TR): fixed.append((base + g, It(rdq(i), "d", rid=(ph+1, i))))
            for k in range(8):
                va.append(It(f"v_add_u32 v{AD+k}, s{sDel}, v{AD+k}", "v", base + max(OWN_TR[4*(8+k)+3-24], 22), hi=base + (TAIL_TR[4*k] - 1 if k < 6 else 63)))
            if ph == 2:
                o, b = A.label("AT_FS"), A.label("AT_FB")
                sc.append(It(f"s_cmp_lg_u32 s{sPend}, 0", "s"))
                sc.append(It(f"s_cbranch_scc1 {o}\n{b}:", "s", hi=base + 63))
                flagstub = (o, b)
        else:
            tail128(base, fixed, "k0")
            n_ = 0
            for T in range(8):
                for qg in range(2):
                    t = TMP + 4*(n_ % 2); n_ += 1
                    lo = base + 8*T + 7 + 8
                    for k in range(2):
                        x = O + 4*(2*(2*T+k)+qg)
                        va.append(It(f"v_cvt_pk_bf16_f32 v{t+2*k}, v{x}, v{x+1}", "v", lo))
                        va.append(It(f"v_cvt_pk_bf16_f32 v{t+2*k+1}, v{x+2}, v{x+3}", "v", lo))
                    for k in range(4): va.append(It(f"v_accvgpr_write_b32 a{Q + 4*(8*qg+T) + k}, v{t+k}", "v", lo))
    sched(A, mf, fixed, [sc, va], carry=[((0, i), -30) for i in range(24)], name="qproj", overnop=7)
    stamp(A, 1, 2)
    for qg in range(2):
        A(f"v_mov_b32 v{NEGM+qg}, 0")
        A(f"v_mov_b32 v{LS+qg}, 0")
    A(f"s_mov_b32 s{sTile}, s{sT0}")
    A(f"s_sub_u32 s{sRem}, s{sN}, 1")
    A(f"s_cmp_eq_u32 s{sMode}, 1")
    A(f"s_cselect_b32 s{sThr}, 0, 2")
    A("s_call_b64 s[36:37], AT_SETC")
    fixed = []; sc = []
    stream_items(0, fixed, sc)
    own128(0, fixed, "k0"); tail128(0, fixed, "n")
    va = [It(f"v_mov_b64 v[{r}:{r+1}], 0", "v") for r in range(O, O+128, 2)]
    sched(A, mf_qk("k0", C), fixed, [sc, va], carry=CARRY128("k0"), name="qk0")
    def fixup(p, init):
        A("s_nop 7")
        for qg in range(2):
            r = [S + 4*(2*kt+qg) + j for kt in range(4) for j in range(4)]
            A(f"v_max3_f32 v{26+qg}, v{r[0]}, v{r[1]}, v{r[2]}")
            for k in range(3, 15, 2): A(f"v_max3_f32 v{26+qg}, v{26+qg}, v{r[k]}, v{r[k+1]}")
            A(f"v_max_f32 v{26+qg}, v{26+qg}, v{r[15]}")
        crossrow(A, "v_max_f32", [26, 27], [2, 3])
        for qg in range(2):
            if not init: A(f"v_max_f32 v{26+qg}, 0, v{26+qg}")
            A(f"v_sub_f32 v{NEGM+qg}, v{NEGM+qg}, v{26+qg}")
            for kt in range(4):
                for j in range(4):
                    x = 4*(2*kt+qg) + j
                    A(f"v_sub_f32 v{S+x}, v{S+x}, v{26+qg}")
                    A(f"v_sub_f32 v{C+x}, v{C+x}, v{26+qg}")
        if not init:
            for qg in range(2): A(f"v_exp_f32 v{26+qg}, -v{26+qg}")
            A("s_nop 0")
            for qg in range(2):
                A(f"v_mul_f32 v{LS+qg}, v{LS+qg}, v{26+qg}")
                for dt in range(16):
                    for j in range(4):
                        x = O + 4*(2*dt+qg) + j
                        A(f"v_mul_f32 v{x}, v{x}, v{26+qg}")
        softmax_plain(p)
    fixup(P[0], True)
    stamp(A, 1, 3)
    A("s_branch AT_H1B")
    A(".p2align 6")
    for par in range(2):
        A(f"AT_BODY{par}:")
        fixed = []; sc = []
        stream_items(0, fixed, sc); own128(0, fixed, "n"); tail128(0, fixed, "v")
        stream_items(64, fixed, sc); own128(64, fixed, "v"); tail128(64, fixed, "n2")
        sc.append(It(f"s_sub_u32 s{sRem}, s{sRem}, 1", "s", 120))
        sc.append(It(f"s_cmp_le_u32 s{sRem}, s{sThr}", "s", hi=127))
        va = [It(f"v_add_f32 v{LS+qg}, v{LS+qg}, v{TS+qg}", "v", 2) for qg in range(2)]
        exs, posts = softmax_groups(P[1-par], lambda kt, qg: 16*kt + 8*qg + 15)
        va += posts
        if OPT["noexp"]: exs = []; va = va[:2]
        if OPT["nodma"]: fixed = [(g, it) for g, it in fixed if it.kind != "m"]
        va.append(It(f"v_max_f32 v26, v{TS}, v{TS+1}", "v"))
        va.append(It(f"v_cmp_nge_f32 vcc, {hex(f2u(PTHR))}, v26", "v"))
        sched(A, mf_qk("n", C) + mf_pv("v", P[par]), fixed, [sc, exs, va], carry=CARRY128("n"), name=f"body{par}", lat=int(OPT["lat"]))
        A(f"s_cbranch_vccnz AT_H{par}")
        if par == 0:
            A(f"s_cbranch_scc1 AT_H0B")
        else:
            A(f"s_cbranch_scc0 AT_BODY0")
            A(f"s_branch AT_H1B")
    for par in range(2):
        A(f"AT_H{par}:")
        fixup(P[1-par], False)
        A(f"AT_H{par}B:")
        A(f"s_cmp_eq_u32 s{sRem}, 0")
        A(f"s_cbranch_scc1 AT_LAST{1-par}")
        A(f"s_cmp_le_u32 s{sRem}, s{sThr}")
        A(f"s_cbranch_scc0 AT_BODY{1-par}")
        A(f"s_add_u32 s{sTile}, s{sT0}, s{sN}")
        A(f"s_sub_u32 s{sTile}, s{sTile}, s{sRem}")
        A("s_call_b64 s[36:37], AT_SETC")
        A(f"s_branch AT_BODY{1-par}")
    A("AT_SETC:")
    A(f"s_lshl_b32 s60, s{sBlk}, 7")
    A(f"s_lshl_b32 s61, s{sTile}, 6")
    A("s_sub_u32 s60, s60, s61")
    A(f"v_add_u32 v2, s60, v{vThr}")
    A("v_cvt_f32_i32 v2, v2")
    A("v_add_f32 v2, 0.5, v2")
    A(f"v_mul_f32 v2, {hex(f2u(BIG))}, v2")
    for kt in range(4):
        for qg in range(2):
            for j in range(4):
                x = C + 4*(2*kt+qg) + j
                A(f"v_add_f32 v{x}, {hex(f2u(-(16*kt + j - 64*qg)*BIG))}, v2")
                A(f"v_min_f32 v{x}, v{x}, v{NEGM+qg}")
    A(f"s_lshl_b32 s60, s{sPair}, 7")
    A("s_lshl_b32 s61, s20, 2")
    A("s_add_u32 s60, s60, s61")
    A(f"s_add_u32 s60, s60, {WS_FLAG}")
    A(f"buffer_load_dword v{vFlag}, off, s[12:15], s60 sc1")
    A("s_setpc_b64 s[36:37]")
    A("AT_NEXT:")
    A(f"s_add_u32 s{sSec}, s{sSec}, 1")
    A(f"s_cmp_eq_u32 s{sSec}, 8")
    A("s_cbranch_scc1 AT_N_WO")
    A(f"s_and_b32 s62, s{sSec}, 3")
    A("s_cmp_eq_u32 s62, 0")
    A("s_cbranch_scc1 AT_N_WQ")
    A("s_cmp_eq_u32 s62, 1")
    A("s_cbranch_scc1 AT_N_K0")
    A("s_cmp_eq_u32 s62, 3")
    A("s_cbranch_scc1 AT_N_VL")
    A(f"s_mov_b32 s{sInc}, 65536")
    A(f"s_lshl_b32 s{sCnt}, s{sSN}, 1")
    A(f"s_sub_u32 s{sCnt}, s{sCnt}, 3")
    A("s_cbranch_scc0 AT_N_RET")
    A(f"s_add_u32 s{sSec}, s{sSec}, 1")
    A("AT_N_VL:")
    A(f"s_mov_b32 s{sA}, s{sB}")
    A(f"s_mov_b32 s{sCnt}, 0")
    A("AT_N_RET:")
    A("s_setpc_b64 s[34:35]")
    A("AT_N_K0:")
    srd(A, 4, 16, WS_SIZE)
    A(f"v_mov_b32 v{vOff}, v{vLin}")
    A(f"s_lshl_b32 s{sA}, s{sST0}, 16")
    A(f"s_add_u32 s{sA}, s{sA}, s{sKV}")
    A(f"s_add_u32 s{sB}, s{sA}, 65536")
    A(f"s_mov_b32 s{sInc}, 32768")
    A(f"s_mov_b32 s{sDs}, 4096")
    A(f"s_mov_b32 s{sCnt}, 0")
    A("s_setpc_b64 s[34:35]")
    A("AT_N_WQ:")
    srd(A, 4, 8, 448*4096*2)
    set_wq()
    A(f"s_mov_b32 s{sST0}, s{sT01}")
    A(f"s_mov_b32 s{sSN}, s{sN1}")
    A("s_setpc_b64 s[34:35]")
    A("AT_N_WO:")
    srd(A, 4, 10, 4096*448*2)
    A(f"v_mov_b32 v{vOff}, v{vWo}")
    A(f"s_mov_b32 s{sA}, 0")
    A(f"s_mov_b32 s{sB}, 128")
    A(f"s_mov_b32 s{sInc}, 256")
    A(f"s_mov_b32 s{sDs}, {32*896}")
    A(f"s_mov_b32 s{sCnt}, 100")
    A("s_setpc_b64 s[34:35]")
    def po_addr():
        A(f"s_lshl_b32 s60, s{sPair}, 2")
        A("s_add_u32 s60, s60, s20")
        A("s_lshl_b32 s61, s60, 9")
        A(f"s_add_u32 s61, s61, {WS_LSE}")
        A("s_lshl_b32 s60, s60, 14")
        A(f"s_add_u32 s60, s60, {WS_PO}")
        A("v_lshlrev_b32 v2, 3, v1")
    A(f"{flagstub[0]}:")
    A(f"s_lshl_b32 s62, s{sPair}, 7")
    A("s_lshl_b32 s63, s20, 2")
    A("s_add_u32 s62, s62, s63")
    A(f"s_add_u32 s62, s62, {WS_FLAG}")
    A("v_mov_b32 v2, 1")
    A("buffer_store_dword v2, off, s[12:15], s62 sc1")
    A(f"s_branch {flagstub[1]}")
    A("AT_LAST1:")
    for r in range(16): A(f"v_mov_b32 v{P[0]+r}, v{P[1]+r}")
    A("AT_LAST0:")
    stamp(A, 1, 4)
    A(f"s_cmp_eq_u32 s{sMode}, 2")
    A("s_cbranch_scc0 AT_L1")
    A("s_mov_b32 s59, 0x100000")
    A("AT_POLL:")
    A(f"v_readfirstlane_b32 s60, v{vFlag}")
    A("s_cmp_eq_u32 s60, 1")
    A("s_cbranch_scc1 AT_GOT")
    A("s_sub_u32 s59, s59, 1")
    A("s_cbranch_scc1 AT_GOT")
    A("s_sleep 2")
    A(f"s_lshl_b32 s60, s{sPair}, 7")
    A("s_lshl_b32 s61, s20, 2")
    A("s_add_u32 s60, s60, s61")
    A(f"s_add_u32 s60, s60, {WS_FLAG}")
    A(f"buffer_load_dword v{vFlag}, off, s[12:15], s60 sc1")
    A("s_waitcnt vmcnt(0)")
    A("s_branch AT_POLL")
    A("AT_GOT:")
    po_addr()
    A(f"buffer_load_dwordx2 v[28:29], v2, s[12:15], s61 offen sc1")
    for f in range(16):
        A(f"buffer_load_dwordx4 {vr(CTX + 4*f, 4)}, v{vL16}, s[12:15], s60 offen offset:{(f % 4)*1024} sc1")
        if f % 4 == 3 and f < 15: A("s_add_u32 s60, s60, 4096")
    A("AT_L1:")
    fixed = []; sc = []
    stream_items(0, fixed, sc); own128(0, fixed, "n")
    va = [It(f"v_add_f32 v{LS+qg}, v{LS+qg}, v{TS+qg}", "v", 2) for qg in range(2)]
    sched(A, mf_pv("n", P[0]), fixed, [sc, va], carry=CARRY128("n"), name="lastpv")
    stamp(A, 1, 5)
    crossrow(A, "v_add_f32", [LS, LS+1], [2, 3])
    A(f"s_cmp_eq_u32 s{sMode}, 2")
    A("s_cbranch_scc1 AT_COMB")
    A(f"s_cmp_eq_u32 s{sMode}, 1")
    A("s_cbranch_scc0 AT_N1")
    load_xn(sBlk1)
    A("AT_N1:")
    for qg in range(2): A(f"v_rcp_f32 v{26+qg}, v{LS+qg}")
    A("s_nop 0")
    for qg in range(2):
        for T in range(8):
            for k in range(2):
                x = O + 4*(2*(2*T+k)+qg); d = CTX + 4*(8*qg+T) + 2*k
                for h_ in range(2):
                    A(f"v_pk_mul_f32 v[{x+2*h_}:{x+2*h_+1}], v[{x+2*h_}:{x+2*h_+1}], v[26:27] op_sel:[0,{qg}] op_sel_hi:[1,{qg}]")
                for h_ in range(2):
                    A(f"v_cvt_pk_bf16_f32 v{d+h_}, v{x+2*h_}, v{x+2*h_+1}")
    A(f"s_cmp_eq_u32 s{sMode}, 1")
    A("s_cbranch_scc0 AT_OPROJ")
    for qg in range(2): A(f"v_log_f32 v{28+qg}, v{LS+qg}")
    po_addr()
    for qg in range(2): A(f"v_sub_f32 v{28+qg}, v{28+qg}, v{NEGM+qg}")
    A(f"buffer_store_dwordx2 v[28:29], v2, s[12:15], s61 offen sc1")
    for f in range(16):
        A(f"buffer_store_dwordx4 {vr(CTX + 4*f, 4)}, v{vL16}, s[12:15], s60 offen offset:{(f % 4)*1024} sc1")
        if f % 4 == 3 and f < 15: A("s_add_u32 s60, s60, 4096")
    A(f"s_mov_b32 s{sBlk}, s{sBlk1}")
    A(f"s_mov_b32 s{sT0}, s{sT01}")
    A(f"s_mov_b32 s{sN}, s{sN1}")
    A(f"s_mov_b32 s{sMode}, s{sMode1}")
    A(f"s_mov_b32 s{sPend}, 1")
    A("s_waitcnt vmcnt(17)")
    A("s_branch AT_SEG")
    A("AT_COMB:")
    for qg in range(2): A(f"v_log_f32 v{26+qg}, v{LS+qg}")
    A("s_waitcnt vmcnt(8)")
    for qg in range(2):
        A(f"v_sub_f32 v{26+qg}, v{26+qg}, v{NEGM+qg}")
        A(f"v_sub_f32 v{26+qg}, v{26+qg}, v{28+qg}")
    for qg in range(2):
        A(f"v_exp_f32 v{28+qg}, v{26+qg}")
        A(f"v_exp_f32 v{26+qg}, -v{26+qg}")
    A("s_nop 0")
    for qg in range(2):
        A(f"v_add_f32 v{28+qg}, 1.0, v{28+qg}")
        A(f"v_add_f32 v{26+qg}, 1.0, v{26+qg}")
        A(f"v_mul_f32 v{26+qg}, v{26+qg}, v{LS+qg}")
    for qg in range(2):
        A(f"v_rcp_f32 v{28+qg}, v{28+qg}")
        A(f"v_rcp_f32 v{26+qg}, v{26+qg}")
    A("s_nop 0")
    n_ = 0
    for qg in range(2):
        for T in range(8):
            for k in range(2):
                x = O + 4*(2*(2*T+k)+qg); d = CTX + 4*(8*qg+T) + 2*k
                t = TMP + 4*(n_ % 2); n_ += 1
                for h_ in range(2):
                    A(f"v_lshlrev_b32 v{t+2*h_}, 16, v{d+h_}")
                    A(f"v_and_b32 v{t+2*h_+1}, 0xffff0000, v{d+h_}")
                    A(f"v_pk_mul_f32 v[{x+2*h_}:{x+2*h_+1}], v[{x+2*h_}:{x+2*h_+1}], v[26:27] op_sel:[0,{qg}] op_sel_hi:[1,{qg}]")
                for h_ in range(2):
                    A(f"v_pk_fma_f32 v[{x+2*h_}:{x+2*h_+1}], v[{t+2*h_}:{t+2*h_+1}], v[28:29], v[{x+2*h_}:{x+2*h_+1}] op_sel:[0,{qg},0] op_sel_hi:[1,{qg},1]")
                for h_ in range(2):
                    A(f"v_cvt_pk_bf16_f32 v{d+h_}, v{x+2*h_}, v{x+2*h_+1}")
    A("AT_OPROJ:")
    stamp(A, 1, 6)
    A("v_lshrrev_b32 v2, 2, v1")
    A("v_bfe_u32 v3, v2, 1, 2")
    A("v_lshlrev_b32 v2, 7, v2")
    A("v_and_b32 v26, 3, v1")
    A("v_lshl_add_u32 v2, v26, 3, v2")
    A(f"v_add_u32 v2, s{sRR}, v2")
    for k in range(4):
        A(f"v_xor_b32 v26, {k}, v3")
        A(f"v_lshl_add_u32 v{AD+k}, v26, 5, v2")
    A(f"s_lshl_b32 s{sO0}, s{sBlk}, 3")
    A(f"s_add_u32 s{sO0}, s{sO0}, s20")
    A(f"s_lshl_b32 s{sO0}, s{sO0}, 4")
    A(f"s_add_u32 s{sO0}, s{sO0}, s21")
    A(f"s_mul_i32 s{sO0}, s{sO0}, 14336")
    A(f"s_add_u32 s{sO0}, s{sO0}, {WS_OP}")
    A(f"s_add_u32 s{sO1}, s{sO0}, {64*14336}")
    A("s_waitcnt vmcnt(16)")
    A("s_barrier")
    def rdo(rho):
        f, hh = rho // 2, rho % 2
        mt, T = f // 8, f % 8
        return f"ds_read_b64_tr_b16 {ar(RING + 4*(f % 16) + 2*hh, 2)}, v{AD + mt} offset:{T*4096 + hh*2048}"
    for rho in range(24): A(rdo(rho))
    mf = []; fixed = []; sc = []; va = []; vb = []
    n_ = 0
    def fit(gaps, lo):
        out = []; cnt = {}
        gi = 0
        for l in lo:
            while gaps[gi] < l or cnt.get(gaps[gi], 0) >= 2: gi += 1
            out.append(gaps[gi]); cnt[gaps[gi]] = cnt.get(gaps[gi], 0) + 1
        return out
    for ph in range(7):
        base = 64*ph
        ob = O + 32*(ph % 2)
        for mt in range(4):
            for qg in range(2):
                for T in range(8):
                    d = vr(ob + 4*(2*mt+qg), 4); f = 8*mt + T
                    mf.append((f"{MF} {d}, {ring(f)}, {vr(CTX + 4*(8*qg+T), 4)}, {'0' if T == 0 else d}", [(ph, 2*f), (ph, 2*f+1)]))
        dma = ph < 4
        stream_items(base, fixed, sc, dma=dma, mark=f"wo{ph+3}", delta=True, nocheck=True)
        SG = [11, 21, 47, 55]
        war = lambda f: 16*((f-16)//8) + 8 + f % 8 if f >= 16 else 0
        og = [g for g in range(0, 40) if (g not in busy or not dma) and g not in SG]
        pos = spread(40, og)
        pos = fit(og, [max(pos[i], war((24+i)//2)) for i in range(40)])
        for i, g in enumerate(pos): fixed.append((base + g, It(rdo(24+i), "d", rid=(ph, 24+i))))
        if ph < 6:
            w = {0: "@wo_start+8", 1: "@wo_start+0"}.get(ph, f"@wo{ph+1}+0")
            fixed.append((base + 40, It(f"s_waitcnt vmcnt({w})", "s")))
            fixed.append((base + 41, It("s_barrier", "b")))
            tg = [g for g in range(42, 64) if g not in SG]
            tp = spread(24, tg)
            tp = fit(tg, [max(tp[i], war(32 + i//2)) for i in range(24)])
            for i, g in enumerate(tp): fixed.append((base + g, It(rdo(i), "d", rid=(ph+1, i))))
            los = [22, 22, max(pos[23], 22), pos[39]]
            his = [39, tp[16] - 1, 63, 63]
            for k in range(4): va.append(It(f"v_add_u32 v{AD+k}, s{sDel}, v{AD+k}", "v", base + los[k], hi=base + his[k]))
        for u in range(2):
            for qg in range(2):
                t = 40 + 4*(n_ % 4); n_ += 1
                for k in range(2):
                    x = ob + 4*(2*(2*u+k)+qg); lo = base + 16*(2*u+k) + 8*qg + 15
                    vb.append(It(f"v_cvt_pk_bf16_f32 v{t+2*k}, v{x}, v{x+1}", "v", lo))
                    vb.append(It(f"v_cvt_pk_bf16_f32 v{t+2*k+1}, v{x+2}, v{x+3}", "v", lo, hi=(lo + 100 if ph < 5 else None)))
                vb.append(It(f"buffer_store_dwordx4 v[{t}:{t+3}], v{vL16}, s[12:15], s{sO0+qg} offen offset:{(ph % 2)*2048 + u*1024} {OPT['st_op']}", "m", gapafter=1))
                if ph % 2 == 1 and u == 1: vb.append(It(f"s_add_u32 s{sO0+qg}, s{sO0+qg}, 4096", "s"))
    tailv = vb[-10:]; vb = vb[:-10]
    sched(A, mf, fixed, [sc, va, vb], carry=[((0, i), -30) for i in range(24)], name="oproj", reserve=[64*ph + g for ph in range(7) for g in (11, 21, 47, 55)])
    A("s_nop 7")
    for it in tailv: A(it.text)
    stamp(A, 1, 7)
    if OPT["stamp"]:
        A("s_waitcnt vmcnt(0)")
        stamp(A, 1, 8)
    A("s_endpgm")
    for o, b in stubs:
        A(f"{o}:")
        A("s_call_b64 s[34:35], AT_NEXT")
        A(f"s_branch {b}")
    A("AT_END:")
    kernel_end(A, name, 512, 256)


def gen_red(A):
    name = "redln_kernel"
    kernel_begin(A, name)
    A("s_cmp_ge_u32 s2, 256")
    A("s_cbranch_scc1 RL_END")
    touch_code(A, 0, "RL_END", vtmp=28, vdst=29)
    A(f"s_load_dwordx2 s[8:9], s[0:1], {KA['x']}")
    A(f"s_load_dwordx2 s[10:11], s[0:1], {KA['ws']}")
    A("v_lshrrev_b32 v2, 6, v0")
    A("v_and_b32 v4, 7, v0")
    A("v_readfirstlane_b32 s20, v2")
    A("v_bfe_u32 v5, v0, 3, 2")
    A("v_lshrrev_b32 v6, 5, v0")
    A("v_lshlrev_b32 v7, 10, v6")
    A("v_lshl_add_u32 v7, v5, 8, v7")
    A("v_lshl_add_u32 v7, v4, 4, v7")
    A("s_lshr_b32 s21, s2, 1")
    A(f"s_mul_i32 s21, s21, {16*14336}")
    A("s_and_b32 s22, s2, 1")
    A("s_lshl_b32 s22, s22, 7")
    A("s_add_u32 s21, s21, s22")
    A(f"s_add_u32 s21, s21, {WS_OP}")
    A("v_mul_u32_u24 v8, 896, v4")
    A("v_lshl_add_u32 v8, v6, 6, v8")
    A("v_lshl_add_u32 v8, v5, 3, v8")
    A(f"s_mul_i32 s23, s2, {8*896}")
    A("s_waitcnt lgkmcnt(0)")
    srd(A, 12, 10, WS_SIZE)
    srd(A, 4, 8, 2048*448*2)
    stamp(A, 2, 0, nw=3)
    A("buffer_load_dwordx2 v[12:13], v8, s[4:7], s23 offen")
    A("buffer_load_dwordx2 v[14:15], v8, s[4:7], s23 offen offset:32")
    for h in range(16):
        A(f"buffer_load_dwordx4 {vr(32+4*h, 4)}, v7, s[12:15], s21 offen")
        if h < 15: A("s_add_u32 s21, s21, 14336")
    A("v_mov_b32 v10, 0x00003f80")
    A("v_mov_b32 v11, 0x3f800000")
    A("s_waitcnt vmcnt(16)")
    for k in range(4):
        A(f"v_lshlrev_b32 v{16+2*k}, 16, v{12+k}")
        A(f"v_and_b32 v{17+2*k}, 0xffff0000, v{12+k}")
    for h in range(16):
        A(f"s_waitcnt vmcnt({15-h})")
        for k in range(4):
            A(f"v_dot2c_f32_bf16 v{16+2*k}, v{32+4*h+k}, v10")
            A(f"v_dot2c_f32_bf16 v{17+2*k}, v{32+4*h+k}, v11")
    stamp(A, 2, 1, nw=3)
    A("s_nop 2")
    for k in range(4): A(f"v_cvt_pk_bf16_f32 v{12+k}, v{16+2*k}, v{17+2*k}")
    A(f"s_add_u32 s23, s23, {WS_H}")
    A("buffer_store_dwordx2 v[12:13], v8, s[12:15], s23 offen")
    A("buffer_store_dwordx2 v[14:15], v8, s[12:15], s23 offen offset:32")
    for k in range(4):
        A(f"v_lshlrev_b32 v{16+2*k}, 16, v{12+k}")
        A(f"v_and_b32 v{17+2*k}, 0xffff0000, v{12+k}")
    A("v_add_f32 v24, v16, v17")
    A("v_mul_f32 v25, v16, v16")
    for k in range(1, 8):
        if k > 1: A(f"v_add_f32 v24, v24, v{16+k}")
        A(f"v_fmac_f32 v25, v{16+k}, v{16+k}")
    A("s_nop 1")
    for r in (24, 25): A(f"v_add_f32_dpp v{r}, v{r}, v{r} row_ror:8 row_mask:0xf bank_mask:0xf")
    crossrow(A, "v_add_f32", [24, 25], [26, 27])
    A("s_lshl_b32 s24, s20, 6")
    A("v_lshlrev_b32 v9, 3, v4")
    A("v_add_u32 v26, s24, v9")
    A("ds_write_b64 v26, v[24:25] offset:8192")
    A("s_waitcnt lgkmcnt(0)")
    A("s_barrier")
    for w in range(7): A(f"ds_read_b64 v[{32+2*w}:{33+2*w}], v9 offset:{8192+64*w}")
    A("s_waitcnt lgkmcnt(0)")
    for w in range(1, 7):
        A(f"v_add_f32 v32, v32, v{32+2*w}")
        A(f"v_add_f32 v33, v33, v{33+2*w}")
    A(f"v_mul_f32 v32, {hex(f2u(1.0/448))}, v32")
    A(f"v_mul_f32 v33, {hex(f2u(1.0/448))}, v33")
    A("v_fma_f32 v33, -v32, v32, v33")
    A("v_max_f32 v33, 0, v33")
    A(f"v_add_f32 v34, {hex(f2u(1e-5))}, v33")
    A("v_rsq_f32 v34, v34")
    A("s_nop 0")
    A("v_mul_f32 v35, v34, v34")
    A("v_mul_f32 v35, v35, v33")
    A(f"v_add_f32 v35, {hex(f2u(1e-5))}, v35")
    A("v_rsq_f32 v35, v35")
    A("s_nop 0")
    A("v_mul_f32 v34, v34, v35")
    for k in range(8):
        A(f"v_sub_f32 v{16+k}, v{16+k}, v32")
        A(f"v_mul_f32 v{16+k}, v{16+k}, v34")
    for k in range(4): A(f"v_cvt_pk_bf16_f32 v{36+k}, v{16+2*k}, v{17+2*k}")
    A("v_lshlrev_b32 v9, 9, v6")
    A("v_lshl_add_u32 v9, v5, 6, v9")
    A("v_lshl_add_u32 v9, v4, 1, v9")
    for k in range(4):
        off = (k >> 1)*256 + (k & 1)*32
        A(f"ds_write_b16 v9, v{36+k} offset:{off}")
        A(f"ds_write_b16_d16_hi v9, v{36+k} offset:{off+16}")
    A("v_lshlrev_b32 v9, 4, v0")
    A("v_lshrrev_b32 v26, 4, v0")
    A("v_lshlrev_b32 v26, 10, v26")
    A("v_and_b32 v27, 15, v0")
    A("v_lshl_add_u32 v26, v27, 4, v26")
    A("s_lshr_b32 s24, s2, 2")
    A(f"s_mul_i32 s24, s24, {28*1024}")
    A("s_and_b32 s25, s2, 3")
    A("s_lshl_b32 s25, s25, 8")
    A("s_add_u32 s24, s24, s25")
    A(f"s_add_u32 s24, s24, {WS_HN}")
    A("s_waitcnt lgkmcnt(0)")
    A("s_barrier")
    A("ds_read_b128 v[40:43], v9")
    A("s_waitcnt lgkmcnt(0)")
    A("buffer_store_dwordx4 v[40:43], v26, s[12:15], s24 offen")
    stamp(A, 2, 2, nw=3)
    A("RL_END:")
    kernel_end(A, name, 96, 96)

def gen_mlp(A, second):
    name = "mlp2_kernel" if second else "mlp1_kernel"
    L = "M2" if second else "M1"
    kid = 4 if second else 3
    NS = 14 if second else 16
    WROW = 4096 if second else 3584
    WBYTES = 2048*1792*2
    ACT = WS_U if second else WS_HN
    kernel_begin(A, name)
    A("s_cmp_ge_u32 s2, 224")
    A(f"s_cbranch_scc1 {L}_END")
    A("s_lshr_b32 s21, s2, 3")
    A("s_mul_i32 s22, s21, 37")
    A("s_lshr_b32 s22, s22, 8")
    A("s_mul_i32 s23, s22, 7")
    A("s_sub_u32 s23, s21, s23")
    A("s_lshl_b32 s22, s22, 3")
    A("s_and_b32 s21, s2, 7")
    A("s_add_u32 s22, s22, s21")
    if not second:
        A("s_cmp_ge_u32 s22, 28")
        A(f"s_cbranch_scc1 {L}_END")
    touch_code(A, 0, f"{L}_END", vtmp=16, vdst=17)
    A(f"s_load_dwordx4 s[28:31], s[0:1], {KA['w2'] if second else KA['w1']}")
    A(f"s_load_dwordx2 s[32:33], s[0:1], {KA['ws']}")
    if second: A(f"s_load_dwordx2 s[34:35], s[0:1], {KA['out']}")
    A("v_lshrrev_b32 v2, 6, v0")
    A("v_and_b32 v1, 63, v0")
    A("v_readfirstlane_b32 s20, v2")
    A("v_lshlrev_b32 v4, 4, v1")
    A("v_lshrrev_b32 v2, 3, v1")
    A(f"v_mul_u32_u24 v5, {WROW}, v2")
    A("v_and_b32 v2, 1, v1")
    A("v_lshl_add_u32 v5, v2, 4, v5")
    A("v_bfe_u32 v2, v1, 1, 2")
    A(f"v_bfe_u32 v3, v1, 4, {2 if second else 1}")
    A("v_xor_b32 v2, v2, v3")
    A("v_xor_b32 v3, 2, v2" if not second else "v_mov_b32 v3, v2")
    A("v_lshl_add_u32 v6, v3, 5, v5")
    A("v_lshl_add_u32 v5, v2, 5, v5")
    A(f"v_add_u32 v6, {8*WROW - 1024}, v6")
    A(f"v_add_u32 v7, {16*WROW - 2048}, v5")
    A(f"v_add_u32 v8, {16*WROW - 2048}, v6")
    A(f"s_mul_i32 s24, s20, {NS*32*WROW}")
    A("s_lshl_b32 s25, s22, 7")
    A("s_add_u32 s24, s24, s25")
    A(f"s_mul_i32 s25, s20, {NS*28*1024}")
    A("s_lshl_b32 s26, s23, 12")
    A("s_add_u32 s25, s25, s26")
    A(f"s_add_u32 s25, s25, {ACT}")
    A("s_lshl_b32 s27, s20, 15")
    A("s_waitcnt lgkmcnt(0)")
    srd(A, 4, 28, WBYTES)
    srd(A, 12, 32, WS_SIZE)
    srd(A, 8, 30, (2048 if second else 1792)*2)
    if second: srd(A, 16, 34, 2048*448*2)
    stamp(A, kid, 0)
    DEPTH = 7
    def issue(s_):
        A(f"s_add_u32 m0, s27, {(s_ % 8)*4096}")
        for t in range(4):
            A(f"buffer_load_dwordx4 {ar(16*(s_ % 8) + 4*t, 4)}, v4, s[12:15], s25 offen offset:{t*1024}")
        for i in range(4):
            A(f"buffer_load_dwordx4 v{5+i}, s[4:7], s24 offen offset:{i*1024} lds")
        A(f";@mark {L}s{s_}")
        A(f"s_add_u32 s24, s24, {32*WROW}")
        A(f"s_add_u32 s25, s25, {28*1024}")
    for s_ in range(DEPTH): issue(s_)
    A("v_lshrrev_b32 v3, 4, v1")
    A("v_and_b32 v2, 15, v1")
    if not second:
        A("v_lshlrev_b32 v9, 3, v3")
        A("s_lshl_b32 s26, s22, 7")
        for t in range(4): A(f"buffer_load_dwordx2 v[{96+2*t}:{97+2*t}], v9, s[8:11], s26 offen offset:{32*t}")
        A("v_lshrrev_b32 v9, 2, v2")
        A("v_lshlrev_b32 v9, 10, v9")
        A("v_lshl_add_u32 v9, v3, 8, v9")
        A("v_and_b32 v10, 3, v2")
        A("v_lshl_add_u32 v9, v10, 4, v9")
        A("s_lshl_b32 s26, s20, 6")
        A("v_add_u32 v9, s26, v9")
        A(f"s_mul_i32 s26, s22, {2*28*1024}")
        A("s_lshl_b32 s21, s23, 12")
        A("s_add_u32 s26, s26, s21")
        A(f"s_add_u32 s26, s26, {WS_U}")
    else:
        A("s_lshl_b32 s26, s22, 6")
        A("s_lshl_b32 s21, s20, 4")
        A("s_add_u32 s26, s26, s21")
        A("v_add_u32 v10, s26, v2")
        A("v_lshlrev_b32 v11, 1, v10")
        A("buffer_load_ushort v104, v11, s[8:11], 0 offen")
        A("v_mul_u32_u24 v9, 896, v10")
        A("v_lshl_add_u32 v9, v3, 5, v9")
        A("s_lshl_b32 s26, s23, 7")
        A("v_add_u32 v9, s26, v9")
        A(f"s_mov_b32 s26, {WS_H}")
        A("buffer_load_dwordx4 v[96:99], v9, s[12:15], s26 offen")
        A("buffer_load_dwordx4 v[100:103], v9, s[12:15], s26 offen offset:16")
    if second:
        A("v_lshrrev_b32 v2, 2, v1")
        A("v_bfe_u32 v3, v2, 1, 2")
        HH = 2048
    else:
        A("v_bfe_u32 v10, v1, 2, 2")
        A("v_lshl_add_u32 v2, v3, 3, v10")
        A("v_and_b32 v3, 1, v3")
        A("v_lshlrev_b32 v3, 1, v3")
        A("v_lshrrev_b32 v10, 1, v10")
        A("v_or_b32 v3, v3, v10")
        HH = 512
    A("v_lshlrev_b32 v2, 7, v2")
    A("v_and_b32 v10, 3, v1")
    A("v_lshl_add_u32 v2, v10, 3, v2")
    A("v_add_u32 v2, s27, v2")
    for k in range(4):
        A(f"v_xor_b32 v10, {k}, v3")
        A(f"v_lshl_add_u32 v{12+k}, v10, 5, v2")
    ACC = 32
    def wf(s_, t): return 128 + 16*(s_ % 2) + 4*t
    def reads(s_):
        A(f"s_waitcnt vmcnt(@{L}s{s_}+0)")
        for t in range(4):
            for hh in range(2):
                A(f"ds_read_b64_tr_b16 {ar(wf(s_, t) + 2*hh, 2)}, v{12+t} offset:{(s_ % 8)*4096 + hh*HH}")
    reads(0)
    stamp(A, kid, 1)
    for s_ in range(NS):
        if s_ + 1 < NS:
            reads(s_ + 1)
            A("s_waitcnt lgkmcnt(8)")
        else:
            A("s_waitcnt lgkmcnt(0)")
        for wt in range(4):
            ts = range(4) if wt % 2 == 0 else range(3, -1, -1)
            for at in ts:
                own, oth = (wt, at) if second else (at, wt)
                d = vr(ACC + 16*own + 4*oth, 4)
                w_ = ar(wf(s_, wt), 4); a_ = ar(16*(s_ % 8) + 4*at, 4)
                x, y = (a_, w_) if second else (w_, a_)
                A(f"{MF} {d}, {x}, {y}, {'0' if s_ == 0 else d}")
        if s_ + DEPTH < NS: issue(s_ + DEPTH)
    stamp(A, kid, 2)
    A("v_add_u32 v10, s27, v4")
    A("s_nop 7")
    for t in range(16): A(f"ds_write_b128 v10, {vr(ACC + 4*t, 4)} offset:{t*1024}")
    A("s_lshl_b32 s21, s20, 12")
    A("v_add_u32 v10, s21, v4")
    A("v_add_u32 v11, 0x10000, v10")
    A("s_waitcnt lgkmcnt(0)")
    A("s_barrier")
    for w in range(4):
        for t in range(4):
            A(f"ds_read_b128 {vr(ACC + 16*w + 4*t, 4)}, v{10 + (w >> 1)} offset:{(w & 1)*32768 + t*1024}")
    A("s_waitcnt lgkmcnt(8)")
    for r in range(16): A(f"v_add_f32 v{ACC+r}, v{ACC+r}, v{ACC+16+r}")
    A("s_waitcnt lgkmcnt(0)")
    for r in range(16): A(f"v_add_f32 v{ACC+32+r}, v{ACC+32+r}, v{ACC+48+r}")
    for r in range(16): A(f"v_add_f32 v{ACC+r}, v{ACC+r}, v{ACC+32+r}")
    if not second:
        c1 = -2.0*math.sqrt(2/math.pi)*math.log2(math.e); c3 = c1*0.044715
        A(f"s_mov_b32 s21, {hex(f2u(c3))}")
        A(f"v_mov_b32 v16, {hex(f2u(c1))}")
        for k in range(8):
            A(f"v_lshlrev_b32 v{48+2*k}, 16, v{96+k}")
            A(f"v_and_b32 v{49+2*k}, 0xffff0000, v{96+k}")
        for r in range(16): A(f"v_add_f32 v{ACC+r}, v{ACC+r}, v{48+r}")
        for r in range(16): A(f"v_mul_f32 v{48+r}, v{ACC+r}, v{ACC+r}")
        for r in range(16): A(f"v_fma_f32 v{48+r}, v{48+r}, s21, v16")
        for r in range(16): A(f"v_mul_f32 v{48+r}, v{48+r}, v{ACC+r}")
        for r in range(16): A(f"v_exp_f32 v{48+r}, v{48+r}")
        for r in range(16): A(f"v_add_f32 v{48+r}, 1.0, v{48+r}")
        for r in range(16): A(f"v_rcp_f32 v{48+r}, v{48+r}")
        for r in range(16): A(f"v_mul_f32 v{ACC+r}, v{ACC+r}, v{48+r}")
        for k in range(8): A(f"v_cvt_pk_bf16_f32 v{64+k}, v{ACC+2*k}, v{ACC+2*k+1}")
        A("buffer_store_dwordx4 v[64:67], v9, s[12:15], s26 offen")
        A(f"s_add_u32 s26, s26, {28*1024}")
        A("buffer_store_dwordx4 v[68:71], v9, s[12:15], s26 offen")
    else:
        A("v_lshlrev_b32 v104, 16, v104")
        for k in range(8):
            A(f"v_lshlrev_b32 v{48+2*k}, 16, v{96+k}")
            A(f"v_and_b32 v{49+2*k}, 0xffff0000, v{96+k}")
        for r in range(16): A(f"v_add_f32 v{ACC+r}, v{ACC+r}, v104")
        for r in range(16): A(f"v_add_f32 v{ACC+r}, v{ACC+r}, v{48+r}")
        for k in range(8): A(f"v_cvt_pk_bf16_f32 v{64+k}, v{ACC+2*k}, v{ACC+2*k+1}")
        A("buffer_store_dwordx4 v[64:67], v9, s[16:19], 0 offen")
        A("buffer_store_dwordx4 v[68:71], v9, s[16:19], 0 offen offset:16")
    stamp(A, kid, 3)
    A(f"{L}_END:")
    kernel_end(A, name, 112 + 160, 112)

def check_tail(g, l):
    import torch
    fetch, bf, cmp, unfrag, ws = g["fetch"], g["bf"], g["cmp"], g["unfrag"], l["ws"]
    cmp("h", bf(fetch(ws, WS_H, 2048*896)).reshape(2048, 448), l["h"])
    hf = bf(fetch(ws, WS_HN, 2048*896)).reshape(64, 28, 4, 16, 8)
    cmp("hn", hf.permute(0, 2, 4, 1, 3).reshape(2048, 448), l["hn"])
    f, r = l["f"], l["r"]
    u = torch.nn.functional.gelu(r(l["hn"]).T @ f["B_w1"] + f["B_b1"], approximate="tanh")
    uf = unfrag(bf(fetch(ws, WS_U, 448*1792*2)).reshape(56, 7, 4, 64, 8), 0)
    if "TL_M2" in l["asm"]: uf = uf.permute(1, 2, 3, 0, 4).reshape(448, 1792)
    else: uf = uf.reshape(56, 7, 4, 4, 4, 32).permute(1, 3, 2, 4, 0, 5).reshape(448, 1792)
    cmp("u", uf, u)

HEADER = open("sequential_preLN__compressed_kv_cla__mixer_token_mlp__prompt.s.ref").read().split("; Override launch")[0]

def build(kernels):
    A = Asm()
    launches = {
        "kv": "; @launch kernel=kvproj_kernel grid=(256,1,1) block=(256,1,1) lds=131072",
        "attn": "; @launch kernel=attn_kernel grid=(256,1,1) block=(256,1,1) lds=131072",
        "red": "; @launch kernel=redln_kernel grid=(256,1,1) block=(448,1,1) lds=9216",
        "m1": "; @launch kernel=mlp1_kernel grid=(224,1,1) block=(256,1,1) lds=131072",
        "m2": "; @launch kernel=mlp2_kernel grid=(224,1,1) block=(256,1,1) lds=131072",
    }
    gens = {"kv": gen_kv, "attn": gen_attn, "red": gen_red, "m1": lambda A: gen_mlp(A, False), "m2": lambda A: gen_mlp(A, True)}
    head = HEADER + "\n".join(launches[k] for k in kernels) + "\n"
    A('.amdgcn_target "amdgcn-amd-amdhsa--gfx950"')
    for k in kernels: gens[k](A)
    A(".text")
    A("ALL_END:")
    A("s_endpgm")
    return head + A.text()

if __name__ == "__main__":
    for a in sys.argv[2:]:
        k, v = a.split("=")
        OPT[k] = {"True": True, "False": False}.get(v, v)
    open(sys.argv[1], "w").write(build(OPT["kernels"].split(",")))
```

```python
import sys, math, struct
from asmlib import *
import gen as G
from gen import *

WS_Q = 0x5200000
OPT.update(dict(nh0=13, stp=18, sig=280, chk=378, st_kv='sc1', novw=False, rtc=True, qst=False, ts=65536, hp=0, noxn=False, st0=10, pfw=True, slp=2, nost=False, pfq=True, kernels="main,red,m1,m2"))

def weave(A, main, side, every, start=0):
    side = list(side); k = 0
    for i, t in enumerate(main):
        A(t)
        if side and i >= start and (i - start) % every == every - 1: A(side.pop(0))
    for t in side: A(t)

class Rec:
    def __init__(self): self.L = []
    def __call__(self, s): self.L.append(s)

def gen_main(A):
    name = "main_kernel"
    KTS = int(OPT["ts"]); KHS = 32*KTS + int(OPT["hp"]); KVB = 0x6000000
    vOff, vWq, vLin, vWo, vRd, vL16 = 4, 5, 6, 7, 8, 9
    NEGM, LS, TS, TMP, vThr, vFlag, vSt, vL4 = 10, 12, 14, 16, 24, 25, 30, 31
    def one(t): return 's_mov_b64 exec, 1\n' + t + '\ns_mov_b64 exec, -1'
    P = [32, 48]; S = 64; C = 96; O = 128; CTX = 64
    ADQ = [10, 11, 12, 13, 14, 15, 28, 29]; ADO = [32, 33, 34, 35]
    RING, Q, PARK = 0, 64, 192
    def xn(ks, qg):
        f = 2*ks + qg
        return 192 + 4*f if f < 16 else 128 + 4*(f - 16)
    gC, gW, rC, rW = 32, 36, 40, 44
    sOff, sA, sB, sInc, sCnt, sSec, sDs, sRW, sRR, sDel = 24, 25, 26, 27, 28, 29, 30, 31, 32, 33
    sSt, sSB, sSO = 38, 39, 47
    sBlk, sT0, sN, sRem, sTile, sThr, sMode = 40, 41, 42, 43, 44, 45, 46
    sNH, sST0, sSN, sKV, sPair, sFl, sO0, sO1, sSpin = 50, 52, 53, 54, 55, 56, 57, 58, 59
    sX0, sX1 = 48, 49
    sSplit, sKVp, vKV = 3, 64, 31
    kernel_begin(A, name)
    A("s_cmp_ge_u32 s2, 256")
    A("s_cbranch_scc1 MN_END")
    A("s_load_dwordx4 s[76:79], s[0:1], 0")
    A("s_load_dwordx4 s[80:83], s[0:1], 24")
    A(f"s_load_dwordx4 s[16:19], s[0:1], {KA['dbg']}")
    A(f"s_load_dwordx2 s[68:69], s[0:1], {KA['wq']}")
    A(f"s_load_dwordx2 s[70:71], s[0:1], {KA['wo']}")
    A(f"s_load_dwordx2 s[84:85], s[0:1], {KA['w1']}")
    A(f"s_load_dwordx2 s[86:87], s[0:1], {KA['w2']}")
    touch_code(A, 1, "MN_END", vtmp=26, vdst=27, sb=96)
    A("v_lshrrev_b32 v2, 6, v0")
    A("v_and_b32 v1, 63, v0")
    A("v_readfirstlane_b32 s20, v2")
    A("s_and_b32 s21, s2, 7")
    A("s_lshl_b32 s21, s21, 1")
    A("s_bfe_u32 s22, s2, 0x10003")
    A("s_add_u32 s21, s21, s22")
    A("s_bfe_u32 s22, s2, 0x10004")
    A("s_lshr_b32 s23, s2, 5")
    A("v_lshrrev_b32 v2, 3, v1")
    A("v_lshrrev_b32 v3, 4, v1")
    A("v_and_b32 v16, 7, v1")
    A("s_lshl_b32 s60, s23, 7")
    A("s_lshl_b32 s61, s20, 5")
    A("s_add_u32 s60, s60, s61")
    A("v_add_u32 v2, s60, v2")
    A("v_lshlrev_b32 v2, 11, v2")
    A("v_xor_b32 v17, v16, v3")
    A(f"v_lshl_add_u32 v{gC}, v17, 4, v2")
    A(f"v_xor_b32 v{gC+1}, 64, v{gC}")
    A(f"v_add_u32 v{gC+2}, {2*(8*2048-1024)}, v{gC}")
    A(f"v_add_u32 v{gC+3}, {3*(8*2048-1024)}, v{gC+1}")
    A(f"v_add_u32 v{gC+1}, {8*2048-1024}, v{gC+1}")
    A("s_lshl_b32 s60, s20, 4")
    A("v_add_u32 v2, s60, v3")
    A("v_lshlrev_b32 v2, 13, v2")
    A("s_lshl_b32 s60, s21, 9")
    A("v_add_u32 v2, s60, v2")
    A("v_and_b32 v16, 1, v1")
    A("v_lshl_add_u32 v2, v16, 4, v2")
    A("v_bfe_u32 v16, v1, 1, 3")
    A("v_xor_b32 v16, v16, v3")
    A("v_lshrrev_b32 v17, 2, v16")
    A("v_lshl_add_u32 v2, v17, 8, v2")
    A("v_and_b32 v17, 3, v16")
    A(f"v_lshl_add_u32 v{gW}, v17, 5, v2")
    A(f"v_xor_b32 v{gW+2}, 256, v{gW}")
    A(f"v_add_u32 v{gW+1}, {4*8192-1024}, v{gW}")
    A(f"v_add_u32 v{gW+3}, {3*(4*8192-1024)}, v{gW+2}")
    A(f"v_add_u32 v{gW+2}, {2*(4*8192-1024)}, v{gW+2}")
    A("s_lshl_b32 s27, s20, 12")
    A("s_mov_b32 s24, 0")
    A("s_mov_b32 s25, 0")
    A("s_lshl_b32 s62, s2, 3")
    A("s_lshl_b32 s63, s20, 1")
    A("s_add_u32 s62, s62, s63")
    A("s_mul_i32 s63, s62, 896")
    A("v_lshrrev_b32 v18, 2, v1")
    A("v_and_b32 v19, 3, v1")
    A("v_lshlrev_b32 v20, 6, v18")
    A("v_lshl_add_u32 v20, v19, 3, v20")
    A("v_cmp_gt_u32 vcc, 56, v1")
    A("v_mov_b32 v21, 0x7fff0000")
    A("s_mov_b32 m0, s27")
    A("v_cndmask_b32 v20, v21, v20, vcc")
    A("s_waitcnt lgkmcnt(0)")
    srd(A, 4, 78, 2048*1024*2)
    A("s_cmp_eq_u32 s22, 0")
    A("s_cselect_b32 s8, s80, s82")
    A("s_cselect_b32 s9, s81, s83")
    A(f"s_mov_b32 s10, {1024*4096*2}")
    A("s_mov_b32 s11, 0x20000")
    A(f"s_mov_b32 s78, {2048*448*2}")
    A("s_mov_b32 s79, 0x20000")
    def dma_c(i): return f"buffer_load_dwordx4 v{gC+i}, s[4:7], s24 offen offset:{i*1024} lds"
    def dma_w(i): return f"buffer_load_dwordx4 v{gW+i}, s[8:11], s25 offen offset:{i*1024} lds"
    def adv_c(par): return f"s_add_u32 s24, s24, {(1 << 21) if par == 0 else (128-(1 << 21)) & 0xffffffff}"
    def adv_w(par): return f"s_add_u32 s25, s25, {128 if par == 0 else 524288-128}"
    XR = 64
    for k, o in enumerate((0, 32, 896, 928)):
        A(f"buffer_load_dwordx2 v[{XR+2*k}:{XR+2*k+1}], v20, s[76:79], s63 offen offset:{o}")
    side = []
    for p in range(4):
        for i in range(4): side.append(dma_c(i) + (f"\ns_add_u32 m0, s27, {p*32768+16384}\n" + adv_c(p & 1) if i == 3 else ""))
        for i in range(4): side.append(dma_w(i) + (f"\ns_add_u32 m0, s27, {(p+1)*32768}\n" + adv_w(p & 1) if i == 3 else ""))
    for t in side[:8]: A(t)
    srd(A, 12, 18, WS_SIZE)
    srd(A, 72, 16, 256)
    stamp(A, 0, 0)
    R = Rec()
    R("s_lshr_b32 s64, s62, 4")
    R("s_mul_i32 s64, s64, 14336")
    R("s_and_b32 s65, s2, 1")
    R("s_lshl_b32 s65, s65, 7")
    R("s_add_u32 s64, s64, s65")
    R(f"s_add_u32 s63, s64, {WS_XN}")
    R("s_lshl_b32 s65, s20, 5")
    R("s_add_u32 s65, s65, 0x20000")
    R("v_lshl_add_u32 v22, v1, 7, s65")
    R("v_lshlrev_b32 v18, 4, v0")
    R("v_add_u32 v18, 0x20000, v18")
    R("v_lshrrev_b32 v19, 3, v0")
    R("v_lshlrev_b32 v19, 8, v19")
    R("v_and_b32 v20, 7, v0")
    R("v_lshl_add_u32 v19, v20, 4, v19")
    R("v_add_u32 v20, 8192, v19")
    R("v_cmp_gt_u32 vcc, 192, v0\ns_nop 1\nv_cndmask_b32 v20, v21, v20, vcc")
    R("v_lshrrev_b32 v3, 4, v1")
    R("v_and_b32 v2, 15, v1")
    R("s_lshr_b32 s60, s20, 1")
    R("s_lshl_b32 s60, s60, 13")
    R("v_lshlrev_b32 v16, 7, v2")
    R("v_add_u32 v16, s60, v16")
    R("v_lshrrev_b32 v17, 1, v2")
    R("v_xor_b32 v17, v17, v3")
    R(f"v_lshl_add_u32 v{rC}, v17, 4, v16")
    R(f"v_xor_b32 v{rC+1}, 64, v{rC}")
    R(f"v_add_u32 v{rC+2}, 0x10000, v{rC}")
    R(f"v_add_u32 v{rC+3}, 0x10000, v{rC+1}")
    R("v_bfe_u32 v16, v1, 2, 2")
    R("v_lshl_add_u32 v17, v3, 3, v16")
    R("v_lshlrev_b32 v17, 8, v17")
    R("v_and_b32 v23, 3, v1")
    R("v_lshl_add_u32 v17, v23, 3, v17")
    R("v_add_u32 v17, 16384, v17")
    R("v_and_b32 v23, 1, v3")
    R("v_lshl_add_u32 v16, v23, 2, v16")
    R("s_and_b32 s60, s20, 1")
    R("s_lshl_b32 s60, s60, 2")
    R("v_xor_b32 v16, s60, v16")
    for nt in range(4):
        R(f"v_xor_b32 v23, {nt}, v16")
        R(f"v_lshl_add_u32 v{rW+nt}, v23, 5, v17")
        R(f"v_add_u32 v{rW+4+nt}, 0x10000, v{rW+nt}")
    R("s_lshl_b32 s60, s20, 4")
    R("v_add_u32 v2, s60, v2")
    R("v_lshlrev_b32 v16, 2, v3")
    R(f"v_sub_u32 v{vThr}, v2, v16")
    R(f"v_lshlrev_b32 v{vL16}, 4, v1")
    R(f"v_lshlrev_b32 v{vL4}, 2, v1")
    R("s_lshl_b32 s60, s20, 10")
    R(f"v_add_u32 v{vLin}, s60, v{vL16}")
    R(f"s_mul_i32 s{sKV}, s21, {KHS}")
    R(f"s_add_u32 s{sKV}, s{sKV}, {KVB}")
    R(f"s_mul_i32 s60, s23, {2*KTS}")
    R(f"s_add_u32 s60, s60, s{sKV}")
    R("s_lshr_b32 s61, s20, 1")
    R(f"s_mul_i32 s61, s61, {KTS}")
    R("s_add_u32 s60, s60, s61")
    R("s_and_b32 s61, s20, 1")
    R("s_lshl_b32 s65, s61, 12")
    R("s_lshl_b32 s61, s61, 14")
    R("s_add_u32 s61, s61, 32768")
    R(f"s_cmp_eq_u32 s22, 0\ns_cselect_b32 s61, s65, s61")
    R("s_lshl_b32 s65, s22, 1")
    R(f"s_lshl_b32 s{sSB}, 2048, s65")
    R(f"s_lshr_b32 s{sSO}, 8192, s65")
    R("s_add_u32 s60, s60, s61")
    R(f"v_add_u32 v{vSt}, s60, v{vL16}")
    R("v_lshrrev_b32 v2, 5, v1")
    R("s_lshl_b32 s60, s20, 1")
    R("v_add_u32 v2, s60, v2")
    R("v_bfe_u32 v16, v1, 1, 4")
    R("v_xor_b32 v16, v16, v2")
    R(f"v_lshlrev_b32 v{vWq}, 13, v2")
    R(f"v_lshl_add_u32 v{vWq}, v16, 5, v{vWq}")
    R("v_and_b32 v16, 1, v1")
    R(f"v_lshl_add_u32 v{vWq}, v16, 4, v{vWq}")
    R("s_lshl_b32 s60, s21, 9")
    R(f"v_add_u32 v{vWq}, s60, v{vWq}")
    R("v_lshrrev_b32 v2, 3, v1")
    R("s_lshl_b32 s60, s21, 8")
    R("s_lshl_b32 s61, s20, 3")
    R("s_add_u32 s60, s60, s61")
    R("v_add_u32 v2, s60, v2")
    R(f"v_mul_u32_u24 v{vWo}, 896, v2")
    R(f"v_lshl_add_u32 v{vWo}, v16, 4, v{vWo}")
    R("v_bfe_u32 v2, v1, 1, 2")
    R("v_xor_b32 v2, v2, v3")
    R(f"v_lshl_add_u32 v{vWo}, v2, 5, v{vWo}")
    R("v_lshrrev_b32 v2, 2, v1")
    R("v_and_b32 v16, 7, v2")
    R("v_lshlrev_b32 v2, 9, v2")
    R("v_and_b32 v17, 3, v1")
    R("v_lshl_add_u32 v2, v17, 3, v2")
    for k in range(8):
        R(f"v_xor_b32 v17, {k}, v16")
        R(f"v_lshl_add_u32 v{ADQ[k]}, v17, 5, v2")
    R("s_lshl_b32 s60, s23, 1")
    R(f"s_sub_i32 s{sNH}, {OPT['nh0']}, s60")
    R(f"s_max_i32 s{sNH}, s{sNH}, 0")
    R("s_sub_u32 s61, 15, s23")
    R("s_sub_u32 s65, 32, s60")
    R(f"s_sub_u32 s65, s65, s{sNH}")
    R("s_add_u32 s60, s60, 2")
    R(f"s_cmp_eq_u32 s22, 0\ns_cselect_b32 s{sBlk}, s23, s61\ns_cselect_b32 s{sT0}, 0, s{sNH}\ns_cselect_b32 s{sN}, s60, s65\ns_cselect_b32 s{sMode}, 3, 2")
    R(f"s_cmp_eq_u32 s{sNH}, 0\ns_cmov_b32 s{sMode}, 0")
    R(f"s_lshl_b32 s{sPair}, s21, 3")
    R(f"s_add_u32 s{sPair}, s{sPair}, s23")
    R(f"s_lshl_b32 s{sPair}, s{sPair}, 2")
    R(f"s_add_u32 s{sPair}, s{sPair}, s20")
    R(f"s_lshl_b32 s{sFl}, s21, 14")
    R(f"s_add_u32 s{sFl}, s{sFl}, {WS_FLAG}")
    R("s_lshr_b32 s60, s2, 4")
    R("s_lshl_b32 s60, s60, 9")
    R("s_lshl_b32 s61, s20, 7")
    R("s_add_u32 s60, s60, s61")
    R(f"s_add_u32 s66, s60, s{sFl}")
    R("s_lshl_b32 s60, s23, 9")
    R("s_add_u32 s60, s60, s61")
    R(f"s_add_u32 s60, s60, s{sFl}")
    R("s_add_u32 s60, s60, 8192")
    R("s_add_u32 s61, s60, 4096")
    R("s_cmp_eq_u32 s22, 0\ns_cselect_b32 s67, s61, s60\ns_cselect_b32 s51, s60, s61")
    R(f"v_lshlrev_b32 v0, 7, v1")
    R("v_mov_b32 v2, 0")
    for r in range(96, 256, 2): R(f"v_mov_b64 v[{r}:{r+1}], 0")
    for r in range(64): R(f"v_accvgpr_write_b32 a{r}, 0")
    weave(A, R.L, side[8:], 11)
    A(one("buffer_store_dword v2, off, s[12:15], s66 sc1\nbuffer_store_dword v2, off, s[12:15], s67 sc1"))
    A("s_waitcnt vmcnt(34)")
    XD = XR + 8; XS = XR + 24
    for row in range(2):
        for k in range(4):
            s_ = XR + 4*row + k; d = XD + 8*row + 2*k
            A(f"v_lshlrev_b32 v{d}, 16, v{s_}")
            A(f"v_and_b32 v{d+1}, 0xffff0000, v{s_}")
    for row in range(2):
        d = XD + 8*row
        A(f"v_add_f32 v{XS+row}, v{d}, v{d+1}")
        A(f"v_mul_f32 v{XS+2+row}, v{d}, v{d}")
        for k in range(1, 8):
            if k > 1: A(f"v_add_f32 v{XS+row}, v{XS+row}, v{d+k}")
            A(f"v_fmac_f32 v{XS+2+row}, v{d+k}, v{d+k}")
    A("s_nop 1")
    allsum16(A, [XS, XS+1, XS+2, XS+3])
    crossrow(A, "v_add_f32", [XS, XS+1, XS+2, XS+3], [XS+4, XS+5, XS+6, XS+7])
    A(f"s_mov_b32 s60, {f2u(1.0/448)}")
    for row in range(2):
        m_, v_ = XS+row, XS+2+row
        A(f"v_mul_f32 v{m_}, s60, v{m_}")
        A(f"v_mul_f32 v{v_}, s60, v{v_}")
        A(f"v_fma_f32 v{v_}, -v{m_}, v{m_}, v{v_}")
        A(f"v_max_f32 v{v_}, 0, v{v_}")
        A(f"v_add_f32 v{v_}, {hex(f2u(1e-5))}, v{v_}")
        A(f"v_rsq_f32 v{v_}, v{v_}")
        A("s_nop 0")
        A(f"v_mul_f32 v{v_}, {hex(f2u(QSCALE))}, v{v_}")
        d = XD + 8*row
        for k in range(8):
            A(f"v_sub_f32 v{d+k}, v{d+k}, v{m_}")
            A(f"v_mul_f32 v{d+k}, v{d+k}, v{v_}")
        for k in range(4):
            A(f"v_cvt_pk_bf16_f32 v{52+4*row+k}, v{d+2*k}, v{d+2*k+1}")
        A(f"ds_write_b128 v22, v[{52+4*row}:{55+4*row}] offset:{16*row}")
    for r in range(64, 96, 2): A(f"v_mov_b64 v[{r}:{r+1}], 0")
    A("s_bfe_u32 s64, s2, 0x20003")
    A("s_sub_u32 s64, 6, s64")
    A("s_cmp_eq_u32 s20, 0")
    A("s_cselect_b32 s64, s64, 99")
    A("s_lshl_b32 s65, s21, 2")
    A("s_bfe_u32 s100, s2, 0x10003")
    A("s_lshl_b32 s100, s100, 2")
    A("s_add_u32 s100, s100, s20")
    A("s_lshl_b32 s100, s100, 13")
    A("s_lshl_b32 s60, s20, 8")
    A("s_add_u32 s60, s60, s2")
    A("s_lshl_b32 s61, s60, 13")
    A("s_add_u32 s80, s68, s61")
    A("s_addc_u32 s81, s69, 0")
    A("s_mov_b32 s83, 0x20000")
    A("s_mul_i32 s33, s60, 11")
    A("s_lshr_b32 s33, s33, 10")
    A("s_sub_u32 s33, 6, s33")
    A("s_cmp_ge_u32 s60, 448")
    A("s_cmov_b32 s33, 99")
    C0, C1, WX, WY = 64, 96, 128, 160
    def rd_c(slot, creg, i, kh):
        base = rC + kh + (2 if slot >= 2 else 0)
        return f"ds_read_b128 {ar(creg + 4*(2*i+kh), 4)}, v{base} offset:{(slot & 1)*32768 + i*2048}"
    def rd_w(slot, wreg, j, kh, hh):
        base = rW + j + (4 if slot >= 2 else 0)
        return f"ds_read_b64_tr_b16 {ar(wreg + 4*(2*j+kh) + 2*hh, 2)}, v{base} offset:{(slot & 1)*32768 + kh*8192 + hh*1024}"
    A("s_waitcnt vmcnt(26) lgkmcnt(0)")
    A("s_barrier")
    A("ds_read_b128 v[52:55], v18")
    A("ds_read_b128 v[56:59], v18 offset:4096")
    for i in range(4):
        for kh in range(2): A(rd_c(0, C0, i, kh))
    for j in range(4):
        for kh in range(2):
            for hh in range(2): A(rd_w(0, WX, j, kh, hh))
    A("s_mov_b32 s26, 7")
    A("s_waitcnt lgkmcnt(15)")
    A("buffer_store_dwordx4 v[52:55], v19, s[12:15], s63 offen sc1")
    A("buffer_store_dwordx4 v[56:59], v20, s[12:15], s63 offen sc1")
    stamp(A, 0, 1)
    A("s_waitcnt vmcnt(20) lgkmcnt(0)")
    A("s_cmp_eq_u32 s22, 0")
    A("s_cbranch_scc0 KV_V")

    DMA = f"buffer_load_dwordx4 v{vOff}, s[4:7], s{sOff} offen lds"
    head_s = [f"s_mov_b32 s{sOff}, s{sA}", f"s_mov_b32 m0, s{sRW}", f"s_mov_b32 s{sA}, s{sB}", f"s_add_u32 s{sB}, s{sOff}, s{sInc}"]
    step_s = ["s_add_u32 m0, m0, 4096", f"s_add_u32 s{sOff}, s{sOff}, s{sDs}"]
    tail_s = [f"s_add_u32 s{sRW}, s{sRW}, 32768", f"s_and_b32 s{sRW}, s{sRW}, 0x1ffff"]
    stubs = []
    DG = [3, 7, 13, 17, 23, 27, 33, 37]
    def chk_s():
        o, b = A.label("AT_NS"), A.label("AT_NB")
        stubs.append((o, b))
        return [f"s_sub_u32 s{sCnt}, s{sCnt}, 1", f"s_cbranch_scc1 {o}\n{b}:"]
    def slot_list(check=True):
        out = []
        for i in range(8):
            t = DMA
            if i == 0: t = "\n".join(head_s) + "\n" + t
            if i < 7: t += "\n" + "\n".join(step_s)
            else: t += "\n" + "\n".join(tail_s + (chk_s() if check else []))
            out.append(t)
        return out
    def stream_items(base, fixed, sc, dma=True, mark=None, delta=False, nocheck=False, ring=True, dg=None):
        dg = dg or DG
        if dma:
            fixed.append((base + dg[0] - 3, It(head_s[0], "s")))
            fixed.append((base + dg[0] - 2, It(head_s[1], "s")))
            fixed.append((base + dg[0] - 2, It(head_s[2], "s")))
            fixed.append((base + dg[0] - 1, It(head_s[3], "s")))
            for i, g in enumerate(dg):
                t = DMA + (f"\n;@mark {mark}" if mark and i == 7 else "")
                fixed.append((base + g, It(t, "m")))
                if i < 7:
                    fixed.append((base + g + 1, It(step_s[0], "s")))
                    fixed.append((base + g + 2, It(step_s[1], "s")))
        if ring and delta:
            sc.append(It(f"s_add_u32 s60, s{sRR}, 32768", "s", base + 4))
            sc.append(It(f"s_and_b32 s60, s60, 0x1ffff", "s"))
            sc.append(It(f"s_sub_u32 s{sDel}, s60, s{sRR}", "s"))
            sc.append(It(f"s_mov_b32 s{sRR}, s60", "s", hi=base + 21))
        elif ring:
            sc.append(It(f"s_add_u32 s{sRR}, s{sRR}, 32768", "s", base + 4))
            sc.append(It(f"s_and_b32 s{sRR}, s{sRR}, 0x1ffff", "s", hi=base + 37))
        if dma:
            sc.append(It(tail_s[0], "s", base + 44))
            sc.append(It(tail_s[1], "s", hi=base + 62))
            if not nocheck:
                c_ = chk_s()
                sc.append(It(c_[0], "s"))
                sc.append(It(c_[1], "s", hi=base + 63))
    def xn_load(ks, qg): return "s_nop 0" if OPT["noxn"] is True else f"buffer_load_dwordx4 v{vL16}, s[12:15], s{sX0+qg} offen offset:{(ks % 4)*1024} sc1 lds" if OPT["noxn"] == "lds" and ks >= 4 else f"buffer_load_dwordx4 {ar(xn(ks, qg), 4)}, v{vL16}, s[12:15], s{sX0+qg} offen offset:{(ks % 4)*1024}" if OPT["noxn"] == "plain" else f"buffer_load_dwordx4 {ar(xn(ks, qg), 4)}, v{vL16}, s[12:15], s{sX0+qg} offen offset:{(ks % 4)*1024} sc1"
    def kv_store(src, u): return "s_nop 0" if OPT["nost"] else f"buffer_store_dwordx4 v[{src}:{src+3}], v{vSt}, s[12:15], s{sSt} offen offset:{u*1024} {OPT['st_kv']}"
    def poll(tag, load, check, nxt):
        A(f"s_mov_b32 s{sSpin}, 0x40000")
        A(f"{tag}_P:")
        for t in check: A(t)
        A(f"s_cbranch_scc1 {nxt}")
        A(f"s_sub_u32 s{sSpin}, s{sSpin}, 1")
        A(f"s_cbranch_scc1 {nxt}")
        A(f"s_sleep {OPT['slp']}")
        A(load)
        A("s_waitcnt vmcnt(0)")
        A(f"s_branch {tag}_P")
        A(f"{nxt}:")
    def publish(flag): return one(f"buffer_store_dword v2, off, s[12:15], s{flag} sc1")
    QBASE = {(0,1): 64, (1,1): 128, (1,0): 192}
    sigstubs = []
    def body(isV, last):
        mf = []; fixed = []; streams = []
        def tile(i, j): return 4*(4*j + i) if isV else 4*(4*i + j)
        def acc(a, b, i, j):
            return ar(tile(i, j), 4) if (a, b) == (0, 0) else vr(QBASE[(a, b)] + tile(i, j), 4)
        def quad(a, b, creg, wreg, tagw):
            for i in range(4):
                js = range(4) if i % 2 == 0 else range(3, -1, -1)
                for n_, j in enumerate(js):
                    for kh in ((0, 1) if n_ % 2 == 0 else (1, 0)):
                        c = ar(creg + 4*(2*i+kh), 4); w = ar(wreg + 4*(2*j+kh), 4)
                        x, y = (c, w) if isV else (w, c)
                        d = acc(a, b, i, j)
                        need = [(tagw, j, kh, 0), (tagw, j, kh, 1)] if tagw else []
                        mf.append((f"{MF} {d}, {x}, {y}, {d}", need))
        dgaps = [3 + 5*k for k in range(8)] if not last else [4 + 5*k for k in range(8)]
        xg = [44, 49, 54, 59]
        def place(base, start, texts):
            g = start
            for rid, t, step in texts:
                while g in dgaps or g in xg: g += 1
                fixed.append((base + g, It(t, "d", rid=rid)))
                g += step
        sc = []
        for e in range(2):
            W0, W1 = (WX, WY) if e == 0 else (WY, WX)
            for half in range(2):
                n = 2*e + half
                base = 64*n
                slot = (n + 1) % 4
                tc, tw = f"c{n}", f"w{n}"
                final = last and n == 3
                if half == 0:
                    quad(0, 0, C0, W0, None); quad(0, 1, C0, W1, tw)
                    rw = (1, W1); rc = (30, C1)
                else:
                    quad(1, 1, C1, W1, None); quad(1, 0, C1, W0, None)
                    rc = (1, C0); rw = (32, W1)
                fixed.append((base, It("s_barrier", "b")))
                if not final:
                    place(base, rw[0], [((tw, j, kh, hh), rd_w(slot, rw[1], j, kh, hh), 1) for j in range(4) for kh in range(2) for hh in range(2)])
                    place(base, rc[0], [((tc, i, kh), rd_c(slot, rc[1], i, kh), 2) for i in range(4) for kh in range(2)])
                if not last:
                    fixed.append((base + dgaps[0] - 1, It(f"s_add_u32 m0, s27, {n*32768}", "s")))
                    fixed.append((base + dgaps[4] - 1, It(f"s_add_u32 m0, s27, {n*32768+16384}", "s")))
                    for i in range(4):
                        fixed.append((base + dgaps[i], It(dma_c(i), "m")))
                        fixed.append((base + dgaps[4+i], It(dma_w(i), "m")))
                    fixed.append((base + dgaps[3] + 1, It(adv_c(n & 1), "s")))
                    fixed.append((base + dgaps[7] + 1, It(adv_w(n & 1), "s")))
                    if n == 0:
                        fixed.append((base + 41, It("s_cmp_eq_u32 s26, 1", "s")))
                        fixed.append((base + 42, It("s_cselect_b32 s60, 0, 0x1000", "s")))
                        fixed.append((base + 44, It(f"buffer_load_dword v{vFlag}, v{vL4}, s[72:75], s60 offen sc1", "m")))
                    if n == 2 and OPT["pfq"]:
                        fixed.append((base + 41, It("s_cmp_eq_u32 s26, s33", "s")))
                        fixed.append((base + 42, It("s_cselect_b32 s82, 8192, 0", "s")))
                        fixed.append((base + 44, It("buffer_load_dword v27, v0, s[80:83], 0 offen", "m")))
                    if n == 1 and OPT["rtc"]:
                        fixed.append((base + 41, It("s_cmp_eq_u32 s26, 1", "s")))
                        fixed.append((base + 42, It("s_cselect_b32 s60, s100, 0x100000", "s")))
                        fixed.append((base + 44, It("buffer_load_dword v27, v0, s[96:99], s60 offen", "m")))
                    vm = [18, 18, 19, 18][n] if OPT["rtc"] else [18, 17, 18, 17][n]
                    fixed.append((base + 63, It(f"s_waitcnt vmcnt({vm}) lgkmcnt(0)", "s")))
                else:
                    stream_items(base, fixed, sc, mark=f"wq{n}_{isV}", nocheck=True, ring=False, dg=dgaps)
                    if n < 2:
                        for k, g in enumerate(xg):
                            fixed.append((base + g, It(xn_load(2*n + k//2, k % 2), "m")))
                    if n == 0: w = f"s_waitcnt vmcnt(@kv_last{isV}+8) lgkmcnt(0)"
                    elif n == 1: w = f"s_waitcnt vmcnt(@kv_last{isV}+0) lgkmcnt(0)"
                    elif n == 2: w = "s_waitcnt lgkmcnt(0)"
                    else: w = None
                    if w: fixed.append((base + 63, It(w, "s")))
        if not last:
            o, b = A.label("KV_SS"), A.label("KV_SB")
            sigstubs.append((o, b))
            fixed.append((246, It("s_sub_u32 s26, s26, 1", "s")))
            fixed.append((247, It("s_cmp_eq_u32 s26, s64", "s")))
            fixed.append((248, It(f"s_cbranch_scc1 {o}\n{b}:", "s")))
            fixed.append((251, It("s_cmp_lg_u32 s26, 0", "s")))
            sched(A, mf, fixed, streams, name=f"kv{isV}")
            return
        st = [It(f"s_mov_b32 s{sSt}, 0", "s", 128+32)]
        TQ = [32, 36, 60]
        for p_ in range(8):
            lo = 128 + 32 + 8 + int(OPT["st0"])*p_
            t = TQ[p_ % 3]
            for k in range(2):
                x = 52 + 4*k
                for r in range(4): st.append(It(f"v_accvgpr_read_b32 v{x+r}, a{8*p_ + 4*k + r}", "v", 128+32+8))
                st.append(It(f"v_cvt_pk_bf16_f32 v{t+2*k}, v{x}, v{x+1}", "v"))
                st.append(It(f"v_cvt_pk_bf16_f32 v{t+2*k+1}, v{x+2}, v{x+3}", "v"))
            st.append(It(kv_store(t, p_ % 2), "m", lo, gapafter=1))
            if p_ % 2 == 1: st.append(It(f"s_add_u32 s{sSt}, s{sSt}, s{sSO}", "s"))
        pk = []
        for src, dst, lo in ((64, 64, 128+64+8), (128, 96, 128+96+8)):
            for r in range(32): pk.append(It(f"v_cvt_pk_bf16_f32 v{dst+r}, v{src+2*r}, v{src+2*r+1}", "v", lo))
        sched(A, mf, fixed, [sc, st, pk], name=f"kvlast{isV}")

    for isV in (0, 1):
        if isV: A("KV_V:")
        A(".p2align 6")
        A(f"KV_LOOP{isV}:")
        body(isV, False)
        A(f"s_cbranch_scc1 KV_LOOP{isV}")
        stamp(A, 0, 2)
        poll(f"KV_X{isV}", f"buffer_load_dword v{vFlag}, v{vL4}, s[72:75], 0 offen sc1",
             [f"v_cmp_eq_u32 vcc, 16, v{vFlag}", "s_nop 1", "s_cmp_eq_u32 vcc_lo, 0xffff"], f"KV_Y{isV}")
        srd(A, 4, 68, 448*4096*2)
        A(f"v_mov_b32 v{vOff}, v{vWq}")
        A(f"s_mov_b32 s{sA}, 0")
        A(f"s_mov_b32 s{sB}, {64*8192}")
        A(f"s_mov_b32 s{sInc}, {128*8192}")
        A(f"s_mov_b32 s{sDs}, {8*8192}")
        A(f"s_lshl_b32 s{sRW}, s20, 10")
        A(f"s_mov_b32 s{sRR}, {3*32768}")
        A(f"s_lshl_b32 s{sX0}, s{sBlk}, 3")
        A(f"s_add_u32 s{sX0}, s{sX0}, s20")
        A(f"s_mul_i32 s{sX0}, s{sX0}, 14336")
        A(f"s_add_u32 s{sX0}, s{sX0}, {WS_XN}")
        A(f"s_add_u32 s{sX1}, s{sX0}, {4*14336}")
        body(isV, True)
        A(f"s_waitcnt vmcnt(@wq2_{isV}+0)")
        if not isV: A("s_branch KV_J")
    A("KV_J:")
    stamp(A, 0, 3)
    A("s_barrier")
    def ring(f): return ar(RING + 4*(f % 16), 4)
    def rdq(rho, ph=0):
        f, hh = rho // 2, rho % 2
        dt, kh = f // 2, f % 2
        return f"ds_read_b64_tr_b16 {ar(RING + 4*(f % 16) + 2*hh, 2)}, v{ADQ[dt & 7]} offset:{(ph & 1)*32768 + kh*16384 + hh*8192 + (dt >> 3)*256}"
    for rho in range(12): A(rdq(rho))
    weave(A, [f"v_cvt_pk_bf16_f32 v{32+r}, v{192+2*r}, v{193+2*r}" for r in range(32)], [rdq(rho) for rho in range(12, 24)], 2)
    def spread(n, gaps):
        extra = n - len(gaps); out = []; acc = 0.0
        if extra < 0:
            return [gaps[(i*len(gaps))//n] for i in range(n)]
        for g in gaps:
            out.append(g); acc += extra / len(gaps)
            if acc >= 0.999: out.append(g); acc -= 1.0
        assert len(out) == n, (len(out), n)
        return out
    mf = []; fixed = []; sc = []; va = []
    STP = int(OPT["stp"])
    stq = []
    for (a_, b_), src in (((0,1), 64), ((1,1), 96), ((1,0), 32)):
        for p_ in range(8): stq.append((a_, b_, p_, src + 4*p_))
    used = set()
    for ph in range(7):
        if ph in (1, 2, 3, 6):
            for g in DG: used |= {64*ph + g, 64*ph + g + 1, 64*ph + g + 2}
            used |= {64*ph, 64*ph + 1, 64*ph + 2}
        used |= {64*ph + 40, 64*ph + 41}
    g0 = int(OPT["chk"])
    used |= {g0, g0 + 2, g0 + 3, 4*64 + 62}
    mgaps = {g0}
    def take(g):
        while g in used: g += 1
        used.add(g); mgaps.add(g)
        return g
    xl = [(ks, qg) for ks in range(4, 14) for qg in range(2)]
    xpos = [3 + 5*k for k in range(12)] + [64 + 44 + 5*k for k in range(4)] + [128 + 44 + 5*k for k in range(4)]
    fixed.append((0, It(f"s_add_u32 s{sX0}, s{sX0}, 4096", "s"))); fixed.append((1, It(f"s_add_u32 s{sX1}, s{sX1}, 4096", "s")))
    used |= {0, 1}
    for (ks, qg), g in zip(xl, xpos):
        g = take(g)
        t = xn_load(ks, qg) + (f"\n;@mark xn{ks//2}" if (ks % 2, qg) == (1, 1) else "")
        fixed.append((g, It(t, "m")))
        if ks % 4 == 3:
            fixed.append((g + 1, It(f"s_add_u32 s{sX0+qg}, s{sX0+qg}, 4096", "s"))); used.add(g + 1)
    for k, (a_, b_, p_, src) in enumerate(stq):
        g = 6 + STP*k
        while g in used or g - 1 in used: g += 1
        if p_ == 0:
            t = f"s_mov_b32 s{sSt}, {a_*16*KTS}" if b_ == 0 else f"s_add_u32 s{sSt}, s{sSB}, {a_*16*KTS}"
            fixed.append((g - 1, It(t, "s")))
        elif p_ % 2 == 0:
            fixed.append((g - 1, It(f"s_add_u32 s{sSt}, s{sSt}, s{sSO}", "s")))
        used.add(g - 1); take(g)
        fixed.append((g, It(kv_store(src, p_ % 2) + ("\n;@mark kvst" if k == 7 else ""), "m")))
        last_store = g
    assert last_store < 447
    SIG = int(OPT["sig"])
    while {SIG, SIG - 1} & used: SIG += 1
    fixed.append((SIG - 1, It("s_waitcnt vmcnt(@kvst+0)", "s")))
    used |= {SIG - 1}; take(SIG)
    fixed.append((SIG, It(publish(66), "m")))
    kvload = f"buffer_load_dword v{vKV}, v0, s[12:15], s{sFl} offen sc1"
    fixed.append((take(g0 - 28), It(kvload + "\n;@mark kvl", "m")))
    fixed.append((g0, It("s_waitcnt vmcnt(@kvl+0)", "s")))
    fixed.append((g0, It(f"v_cmp_le_u32 vcc, 1, v{vKV}", "v")))
    fixed.append((g0 + 2, It("s_cmp_eq_u64 vcc, -1", "s")))
    fixed.append((g0 + 3, It("s_cbranch_scc0 AT_KVS\nAT_KVB:", "s")))
    fixed.append((4*64 + 62, It("s_call_b64 s[34:35], AT_NEXT", "s")))
    A(f"s_mov_b32 s{sSplit}, 0")
    A(f"s_mov_b32 s{sKVp}, {WS_SIZE}")
    A(f"s_cmp_eq_u32 s{sMode}, 3")
    A(f"s_cselect_b32 s{sSec}, 0, 4")
    A(f"s_mov_b32 s{sST0}, s{sT0}")
    A(f"s_mov_b32 s{sSN}, s{sN}")
    def rd128(f): return f"ds_read_b128 {ring(f)}, v{vRd} offset:{f*1024}"
    TAILG = list(range(42, 64, 2)) + [63]
    A(f"v_add_u32 v{vRd}, s{sRR}, v{vL16}")
    A("v_mov_b32 v2, 1")
    for ph in range(7):
        base = 64*ph
        for dt in range(16):
            for qg, kh in ((0,0),(0,1),(1,1),(1,0)):
                d = vr(O + 4*(2*dt+qg), 4)
                first = ph == 0 and (qg, kh) in ((0,0),(1,1))
                f = 2*dt + kh
                mf.append((f"{MF} {d}, {ring(f)}, {ar(xn(2*ph+kh, qg), 4)}, {'0' if first else d}", [(ph, 2*f), (ph, 2*f+1)]))
        dma = ph in (1, 2, 3, 6)
        stream_items(base, fixed, sc, dma=dma, mark=f"wq{ph+3}", ring=False, nocheck=ph < 5)
        blocked = {g - base for g in mgaps} | (set(DG) | {1} if dma else set())
        own = spread(40, [g for g in range(0, 40) if g not in blocked])
        assert all(g >= 4*(((24+i)//2 - 16)//2) + 3 for i, g in enumerate(own) if i >= 8)
        for i, g in enumerate(own): fixed.append((base + g, It(rdq(24+i, ph), "d", rid=(ph, 24+i))))
        if ph < 6:
            w = {0: None, 1: "@xn2+0", 2: "@xn3+0", 3: "@wq4+0", 4: "@wq5+0", 5: "@wq6+0"}[ph]
            if w and not OPT["novw"]: fixed.append((base + 40, It(f"s_waitcnt vmcnt({w})", "s")))
            fixed.append((base + 41, It("s_barrier", "b")))
            tl = spread(24, [g for g in range(42, 64) if g not in blocked])
            assert all(g >= 4*((16 + i//2)//2) + 3 for i, g in enumerate(tl))
            for i, g in enumerate(tl): fixed.append((base + g, It(rdq(i, ph+1), "d", rid=(ph+1, i))))
            for k in range(8 if ph % 2 else 0):
                va.append(It(f"v_xor_b32 v{ADQ[k]}, 0x10000, v{ADQ[k]}", "v", base + own[4*(8+k)+3-24], hi=base + (tl[4*k] - 1 if k < 6 else 63)))
        else:
            n_ = 0
            for T in range(8):
                for qg in range(2):
                    t = TMP + 4*(n_ % 2); n_ += 1
                    lo = base + 8*T + 7 + 8
                    for k in range(2):
                        x = O + 4*(2*(2*T+k)+qg)
                        va.append(It(f"v_cvt_pk_bf16_f32 v{t+2*k}, v{x}, v{x+1}", "v", lo))
                        va.append(It(f"v_cvt_pk_bf16_f32 v{t+2*k+1}, v{x+2}, v{x+3}", "v", lo))
                    for k in range(4): va.append(It(f"v_accvgpr_write_b32 a{Q + 4*(8*qg+T) + k}, v{t+k}", "v", lo))
    QS = [8, 10, 76, 78, 96, 98, 100]
    if OPT["qst"]:
        qs = []
        for k in range(14):
            qs.append(It("s_memtime s[90:91]", "s", 32*k + 12, gapafter=12))
            qs.append(It(f"v_writelane_b32 v26, s90, {k+1}", "v"))
        A("v_writelane_b32 v26, s92, 0")
        va[:0] = []
        sc2 = [qs]
    else: sc2 = []
    sched(A, mf, fixed, [sc] + sc2 + [va], carry=[((0, i), -30) for i in range(24)], name="qproj", overnop=7, overside=slot_list() + slot_list(), overevery=5)
    if OPT["qst"]:
        A("s_waitcnt lgkmcnt(0)")
        A("s_lshl_b32 s94, s2, 2\ns_add_u32 s94, s94, s20\ns_lshl_b32 s94, s94, 7")
        A(f"s_add_u32 s94, s94, {WS_STAMP + 0x40000}")
        A("v_lshlrev_b32 v3, 2, v1")
        A("s_mov_b64 exec, 0xffff")
        A("buffer_store_dword v26, v3, s[12:15], s94 offen")
        A("s_mov_b64 exec, -1")
    stamp(A, 0, 4)
    if OPT["pfw"]:
        l = A.label("PC")
        A("s_lshl_b32 s60, s20, 8")
        A("s_add_u32 s60, s60, s2")
        A("s_lshl_b32 s61, s60, 13")
        for d, b_ in ((76, 70), (84, 84), (86, 86)):
            A(f"s_add_u32 s{d}, s{b_}, s61")
            A(f"s_addc_u32 s{d+1}, s{b_+1}, 0")
        A("s_getpc_b64 s[62:63]")
        A(f"{l}:")
        A(f"s_sub_u32 s61, s61, {448*8192}-(MN_END-{l})")
        A("s_add_u32 s62, s62, s61")
        A("s_addc_u32 s63, s63, 0")
        A("s_mul_i32 s9, s60, 6")
        A("s_lshr_b32 s9, s9, 10")
        A("s_add_u32 s10, s9, 3")
        A("s_add_u32 s11, s9, 8")
        A("s_cmp_ge_u32 s60, 448")
        A("s_cmov_b64 s[76:77], s[62:63]")
        A("s_cmp_ge_u32 s60, 896")
        A("s_cmov_b32 s10, 99")
        A("s_cmov_b32 s11, 99")
        A("s_cmp_ge_u32 s60, 448+(ALL_END-MN_END)/8192")
        A("s_cmov_b64 s[76:77], s[84:85]")
        A("s_cmov_b64 s[84:85], s[86:87]")
        A("s_cmov_b32 s9, s10")
        A("s_cmov_b32 s10, s11")
        A("s_mov_b32 s8, 0")
    def q_addr():
        A(f"s_lshl_b32 s60, s{sPair}, 14")
        A(f"s_add_u32 s60, s60, {WS_Q}")
    A("s_waitcnt vmcnt(@wq9+0)")
    stamp(A, 0, 5)
    CARRY128 = lambda tag: [((tag, f), TAILG[f] - 64) for f in range(12)]
    def own128(base, fixed, tag):
        for f in range(12, 32): fixed.append((base + 2*(f-12), It(rd128(f), "d", rid=(tag, f))))
    VMW = 18
    def tail128(base, fixed, tag, vm=VMW):
        fixed.append((base + 38, It(f"v_add_u32 v{vRd}, s{sRR}, v{vL16}", "v")))
        fixed.append((base + 40, It(f"s_waitcnt vmcnt({vm})", "s")))
        fixed.append((base + 41, It("s_barrier", "b")))
        for f in range(12): fixed.append((base + TAILG[f], It(rd128(f), "d", rid=(tag, f))))
    def mf_qk(tag, cin):
        mf = []
        for kt in range(4):
            for qg in range(2):
                for T in range(8):
                    d = vr(S + 4*(2*kt+qg), 4)
                    c = vr(cin + 4*(2*kt+qg), 4) if T == 0 else d
                    mf.append((f"{MF} {d}, {ring(8*kt+T)}, {ar(Q + 4*(8*qg+T), 4)}, {c}", [(tag, 8*kt+T)]))
        return mf
    def mf_pv(tag, p):
        mf = []
        for dt in range(16):
            for qg, T in ((0,0),(0,1),(1,1),(1,0)):
                d = vr(O + 4*(2*dt+qg), 4)
                mf.append((f"{MF} {d}, {ring(2*dt+T)}, {vr(p + 4*(2*qg+T), 4)}, {d}", [(tag, 2*dt+T)]))
        return mf
    TSETS = [[16, 17, 18, 19], [20, 21, 22, 23], [28, 29, 30, 5]]
    def softmax_groups(p, lo_of):
        exs, posts, last_use = [], [], {}
        gi = 0
        for kt in range(4):
            for qg in range(2):
                t = TSETS[gi % 3]; s0 = S + 4*(2*kt+qg); d = p + 4*(2*qg + kt//2) + 2*(kt % 2)
                ex = []
                for j in range(4):
                    deps = [(last_use[t[j]], 0)] if t[j] in last_use else []
                    ex.append(It(f"v_exp_f32 v{t[j]}, v{s0+j}", "x", lo_of(kt, qg), deps=deps))
                def post(txt, *js):
                    it = It(txt, "v", deps=[(ex[j], 1) for j in js])
                    for j in js: last_use[t[j]] = it
                    posts.append(it)
                if kt == 0: post(f"v_add_f32 v{TS+qg}, v{t[0]}, v{t[1]}", 0, 1)
                else:
                    post(f"v_add_f32 v{TS+qg}, v{TS+qg}, v{t[0]}", 0)
                    post(f"v_add_f32 v{TS+qg}, v{TS+qg}, v{t[1]}", 1)
                post(f"v_cvt_pk_bf16_f32 v{d}, v{t[0]}, v{t[1]}", 0, 1)
                post(f"v_add_f32 v{TS+qg}, v{TS+qg}, v{t[2]}", 2)
                post(f"v_add_f32 v{TS+qg}, v{TS+qg}, v{t[3]}", 3)
                post(f"v_cvt_pk_bf16_f32 v{d+1}, v{t[2]}, v{t[3]}", 2, 3)
                exs += ex
                gi += 1
        return exs, posts
    def softmax_plain(p, A):
        exs, posts = softmax_groups(p, lambda kt, qg: 0)
        pi = 0
        for gi in range(9):
            for it in exs[4*gi:4*gi+4]: A(it.text)
            if gi == 8: A("s_nop 0")
            if gi >= 1:
                k = 5 if gi <= 2 else 6
                for it in posts[pi:pi+k]: A(it.text)
                pi += k
    TOUCH = "buffer_load_dword v27, v0, s[80:83], 0 offen"
    A("AT_SEG:")
    A(f"v_add_u32 v{vRd}, s{sRR}, v{vL16}")
    A("s_barrier")
    for f in range(12): A(rd128(f))
    A("AT_SEG2:")
    for qg in range(2):
        A(f"v_mov_b32 v{NEGM+qg}, 0")
        A(f"v_mov_b32 v{LS+qg}, 0")
    A(f"s_mov_b32 s{sTile}, s{sT0}")
    A(f"s_sub_u32 s{sRem}, s{sN}, 1")
    A(f"s_cmp_eq_u32 s{sMode}, 1")
    A(f"s_cselect_b32 s{sThr}, 0, 2")
    A("s_call_b64 s[36:37], AT_SETC")
    stamp(A, 0, 6)
    fixed = []; sc = []
    stream_items(0, fixed, sc)
    own128(0, fixed, "k0"); tail128(0, fixed, "n", vm=16)
    kvload2 = f"buffer_load_dword v{vKV}, v0, s[12:15], s{sKVp} offen sc1"
    fixed.append((43, It("v_mov_b32 v2, 2", "v")))
    fixed.append((43, It("s_nop 0", "s")))
    fixed.append((49, It(publish(66), "m")))
    fixed.append((59, It(kvload2, "m")))
    fixed.append((61, It(f"buffer_load_dword v{vFlag}, off, s[12:15], s51 sc1", "m")))
    va = [It(f"v_mov_b64 v[{r}:{r+1}], 0", "v") for r in range(O, O+128, 2)]
    sched(A, mf_qk("k0", C), fixed, [sc, va], carry=CARRY128("k0"), name="qk0")
    def fixup(p, init, A=A):
        A("s_nop 7")
        for qg in range(2):
            r = [S + 4*(2*kt+qg) + j for kt in range(4) for j in range(4)]
            A(f"v_max3_f32 v{2+qg}, v{r[0]}, v{r[1]}, v{r[2]}")
            for k in range(3, 15, 2): A(f"v_max3_f32 v{2+qg}, v{2+qg}, v{r[k]}, v{r[k+1]}")
            A(f"v_max_f32 v{2+qg}, v{2+qg}, v{r[15]}")
        crossrow(A, "v_max_f32", [2, 3], [16, 17])
        for qg in range(2):
            if not init: A(f"v_max_f32 v{2+qg}, 0, v{2+qg}")
            A(f"v_sub_f32 v{NEGM+qg}, v{NEGM+qg}, v{2+qg}")
            for kt in range(4):
                for j in range(4):
                    x = 4*(2*kt+qg) + j
                    A(f"v_sub_f32 v{S+x}, v{S+x}, v{2+qg}")
                    A(f"v_mov_b32 v{C+x}, v{NEGM+qg}")
        if not init:
            for qg in range(2): A(f"v_exp_f32 v{2+qg}, -v{2+qg}")
            A("s_nop 0")
            for qg in range(2):
                A(f"v_mul_f32 v{LS+qg}, v{LS+qg}, v{2+qg}")
                for dt in range(16):
                    x = O + 4*(2*dt+qg)
                    for h_ in range(2):
                        A(f"v_pk_mul_f32 v[{x+2*h_}:{x+2*h_+1}], v[{x+2*h_}:{x+2*h_+1}], v[2:3] op_sel:[0,{qg}] op_sel_hi:[1,{qg}]")
        softmax_plain(p, A)
    A(f"s_cmp_eq_u32 s{sMode}, 2")
    A("s_cbranch_scc1 AT_INITQ")
    fixup(P[0], True)
    A("s_branch AT_H1B")
    A("AT_INITQ:")
    q_addr()
    R = Rec(); fixup(P[0], True, R)
    weave(A, R.L, [f"buffer_store_dwordx4 {ar(Q + 4*f, 4)}, v{vL16}, s[12:15], s60 offen offset:{(f % 4)*1024} sc1" + ("\ns_add_u32 s60, s60, 4096" if f % 4 == 3 else "") for f in range(16)], 9)
    A(f"s_mov_b32 s{sThr}, 99")
    stamp(A, 0, 7)
    A(".p2align 6")
    for par in range(2):
        A(f"AT_BODY{par}:")
        fixed = []; sc = []
        stream_items(0, fixed, sc); own128(0, fixed, "n"); tail128(0, fixed, "v")
        stream_items(64, fixed, sc); own128(64, fixed, "v"); tail128(64, fixed, "n2")
        if OPT["pfw"]:
            sc.append(It("s_cmp_eq_u32 s8, s9", "s", 112))
            sc.append(It("s_cselect_b32 s82, 8192, 0", "s"))
            sc.append(It("s_cmov_b32 s9, s10", "s"))
            sc.append(It("s_cmov_b32 s10, s11", "s"))
            sc.append(It("s_mov_b64 s[80:81], s[76:77]", "s"))
            sc.append(It("s_cmov_b64 s[76:77], s[84:85]", "s"))
            sc.append(It("s_cmov_b64 s[84:85], s[86:87]", "s"))
            sc.append(It("s_add_u32 s8, s8, 1", "s", hi=122))
            fixed.append((123, It(kvload2, "m")))
            fixed.append((125, It(TOUCH, "m")))
        sc.append(It(f"s_sub_u32 s{sRem}, s{sRem}, 1", "s", 120))
        sc.append(It(f"s_cmp_le_u32 s{sRem}, s{sThr}", "s", hi=127))
        va = [It(f"v_add_f32 v{LS+qg}, v{LS+qg}, v{TS+qg}", "v", 2) for qg in range(2)]
        exs, posts = softmax_groups(P[1-par], lambda kt, qg: 16*kt + 8*qg + 15)
        va += posts
        va.append(It(f"v_max_f32 v26, v{TS}, v{TS+1}", "v"))
        va.append(It(f"v_cmp_nge_f32 vcc, {hex(f2u(PTHR))}, v26", "v"))
        sched(A, mf_qk("n", C) + mf_pv("v", P[par]), fixed, [sc, exs, va], carry=CARRY128("n"), name=f"body{par}", lat=int(OPT["lat"]))
        A(f"s_cbranch_vccnz AT_H{par}")
        if par == 0:
            A(f"s_cbranch_scc1 AT_H0B")
        else:
            A(f"s_cbranch_scc0 AT_BODY0")
            A(f"s_branch AT_H1B")
    for par in range(2):
        A(f"AT_H{par}:")
        fixup(P[1-par], False)
        A(f"AT_H{par}B:")
        if par == 0:
            A(f"s_cmp_eq_u32 s{sThr}, 99")
            A("s_cbranch_scc0 AT_H0C")
            A("v_mov_b32 v2, 1")
            A(f"s_mov_b32 s{sThr}, 2")
            A("s_waitcnt vmcnt(18)")
            A(publish(67))
            A("AT_H0C:")
        A(f"s_cmp_eq_u32 s{sRem}, 0")
        A(f"s_cbranch_scc1 AT_LAST{1-par}")
        A(f"s_cmp_le_u32 s{sRem}, s{sThr}")
        A(f"s_cbranch_scc0 AT_BODY{1-par}")
        A(f"s_add_u32 s{sTile}, s{sT0}, s{sN}")
        A(f"s_sub_u32 s{sTile}, s{sTile}, s{sRem}")
        A("s_call_b64 s[36:37], AT_SETC")
        A(f"s_branch AT_BODY{1-par}")
    A("AT_SETC:")
    A(f"s_lshl_b32 s60, s{sBlk}, 7")
    A(f"s_lshl_b32 s61, s{sTile}, 6")
    A("s_sub_u32 s60, s60, s61")
    A(f"v_add_u32 v2, s60, v{vThr}")
    A("v_cvt_f32_i32 v2, v2")
    A("v_add_f32 v2, 0.5, v2")
    A(f"v_mul_f32 v2, {hex(f2u(BIG))}, v2")
    for kt in range(4):
        for qg in range(2):
            for j in range(4):
                x = C + 4*(2*kt+qg) + j
                A(f"v_add_f32 v{x}, {hex(f2u(-(16*kt + j - 64*qg)*BIG))}, v2")
                A(f"v_min_f32 v{x}, v{x}, v{NEGM+qg}")
    if OPT["rtc"]: A("buffer_load_dword v27, v0, s[96:99], s100 offen")
    A(f"buffer_load_dword v{vFlag}, off, s[12:15], s51 sc1")
    A("s_setpc_b64 s[36:37]")
    A("AT_KVS:")
    poll("AT_KV", kvload, [f"v_cmp_le_u32 vcc, 1, v{vKV}", "s_nop 1", "s_cmp_eq_u64 vcc, -1"], "AT_KVOK")
    A("s_branch AT_KVB")
    A("AT_N_C:")
    A("s_waitcnt vmcnt(9)")
    poll("AT_K2", kvload, [f"v_cmp_le_u32 vcc, 2, v{vKV}", "s_nop 1", "s_cmp_eq_u64 vcc, -1"], "AT_K2OK")
    A(f"s_sub_u32 s{sCnt}, s{sSplit}, 1")
    A(f"s_mov_b32 s{sSplit}, 0")
    A(f"s_mov_b32 s{sKVp}, {WS_SIZE}")
    A("s_setpc_b64 s[34:35]")
    A("AT_N_A:")
    A(f"s_lshl_b32 s62, s{sST0}, 1")
    A("s_sub_u32 s62, 29, s62")
    A(f"s_sub_u32 s{sSplit}, s{sCnt}, s62")
    A(f"s_mov_b32 s{sCnt}, s62")
    A(f"s_mov_b32 s{sKVp}, s{sFl}")
    A("s_setpc_b64 s[34:35]")
    A("AT_NEXT:")
    A(f"s_cmp_lg_u32 s{sSplit}, 0")
    A("s_cbranch_scc1 AT_N_C")
    A(f"s_add_u32 s{sSec}, s{sSec}, 1")
    A(f"s_cmp_eq_u32 s{sSec}, 8")
    A("s_cbranch_scc1 AT_N_WO")
    A(f"s_and_b32 s62, s{sSec}, 3")
    A("s_cmp_eq_u32 s62, 0")
    A("s_cbranch_scc1 AT_N_H")
    A("s_cmp_eq_u32 s62, 1")
    A("s_cbranch_scc1 AT_N_K0")
    A("s_cmp_eq_u32 s62, 3")
    A("s_cbranch_scc1 AT_N_VL")
    A(f"s_mov_b32 s{sInc}, {KTS}")
    A(f"s_lshl_b32 s{sCnt}, s{sSN}, 1")
    A(f"s_sub_u32 s{sCnt}, s{sCnt}, 3")
    A("s_cbranch_scc0 AT_N_R2")
    A(f"s_add_u32 s{sSec}, s{sSec}, 1")
    A("AT_N_VL:")
    A(f"s_mov_b32 s{sA}, s{sB}")
    A(f"s_mov_b32 s{sCnt}, 0")
    A("AT_N_RET:")
    A("s_setpc_b64 s[34:35]")
    A("AT_N_R2:")
    A("s_cmp_eq_u32 s22, 1")
    A("s_cbranch_scc1 AT_N_A")
    A("s_setpc_b64 s[34:35]")
    A("AT_N_H:")
    A(f"s_mov_b32 s{sSec}, 5")
    A(f"s_mov_b32 s{sST0}, 0")
    A(f"s_mov_b32 s{sSN}, s{sNH}")
    A("AT_N_K0:")
    srd(A, 4, 18, WS_SIZE)
    A(f"v_mov_b32 v{vOff}, v{vLin}")
    A(f"s_mul_i32 s{sA}, s{sST0}, {KTS}")
    A(f"s_add_u32 s{sA}, s{sA}, s{sKV}")
    A(f"s_add_u32 s{sB}, s{sA}, {KTS}")
    A(f"s_mov_b32 s{sInc}, 32768")
    A(f"s_mov_b32 s{sDs}, 4096")
    A(f"s_mov_b32 s{sCnt}, 0")
    A("s_setpc_b64 s[34:35]")
    A("AT_N_WO:")
    srd(A, 4, 70, 4096*448*2)
    A(f"v_mov_b32 v{vOff}, v{vWo}")
    A(f"s_mov_b32 s{sA}, 0")
    A(f"s_mov_b32 s{sB}, 128")
    A(f"s_mov_b32 s{sInc}, 256")
    A(f"s_mov_b32 s{sDs}, {32*896}")
    A(f"s_mov_b32 s{sCnt}, 100")
    A("s_setpc_b64 s[34:35]")
    def po_addr():
        A(f"s_lshl_b32 s63, s{sPair}, 9")
        A(f"s_add_u32 s63, s63, {WS_LSE}")
        A(f"s_lshl_b32 s60, s{sPair}, 14")
        A(f"s_add_u32 s60, s60, {WS_PO}")
        A("v_lshlrev_b32 v2, 3, v1")
    A("AT_LAST1:")
    for r in range(0, 16, 2): A(f"v_mov_b64 v[{P[0]+r}:{P[0]+r+1}], v[{P[1]+r}:{P[1]+r+1}]")
    A("AT_LAST0:")
    stamp(A, 0, 8)
    A(f"s_cmp_lt_u32 s{sMode}, 2")
    A("s_cbranch_scc1 AT_LP")
    poll("AT_PF", f"buffer_load_dword v{vFlag}, off, s[12:15], s51 sc1",
         [f"v_readfirstlane_b32 s60, v{vFlag}", "s_cmp_eq_u32 s60, 1"], "AT_PFOK")
    A(f"s_cmp_eq_u32 s{sMode}, 2")
    A("s_cbranch_scc1 AT_LA")
    def lastpv(dst, tag):
        fixed = []; sc = []
        stream_items(0, fixed, sc, dma=False); own128(0, fixed, "n")
        if dst:
            for f in range(16):
                fixed.append((1 + 4*f, It(f"buffer_load_dwordx4 {dst(f)}, v{vL16}, s[12:15], s60 offen offset:{(f % 4)*1024} sc1", "m")))
                if f % 4 == 3 and f < 15: fixed.append((2 + 4*f, It("s_add_u32 s60, s60, 4096", "s")))
        va = [It(f"v_add_f32 v{LS+qg}, v{LS+qg}, v{TS+qg}", "v", 2) for qg in range(2)]
        sched(A, mf_pv("n", P[0]), fixed, [sc, va], carry=CARRY128("n"), name=tag)
        crossrow(A, "v_add_f32", [LS, LS+1], [16, 17])
    q_addr()
    lastpv(lambda f: ar(Q + 4*f, 4), "lastq")
    A("s_branch AT_NORM")
    A("AT_LP:")
    lastpv(None, "lastp")
    A("AT_NORM:")
    stamp(A, 0, 9)
    for qg in range(2): A(f"v_rcp_f32 v{2+qg}, v{LS+qg}")
    A("s_nop 0")
    R = Rec()
    for qg in range(2):
        for T in range(8):
            for k in range(2):
                x = O + 4*(2*(2*T+k)+qg); d = CTX + 4*(8*qg+T) + 2*k
                for h_ in range(2):
                    R(f"v_pk_mul_f32 v[{x+2*h_}:{x+2*h_+1}], v[{x+2*h_}:{x+2*h_+1}], v[2:3] op_sel:[0,{qg}] op_sel_hi:[1,{qg}]")
                for h_ in range(2):
                    R(f"v_cvt_pk_bf16_f32 v{d+h_}, v{x+2*h_}, v{x+2*h_+1}")
    weave(A, R.L, slot_list(), 14)
    A(f"s_cmp_eq_u32 s{sMode}, 0")
    A("s_cbranch_scc1 AT_OPROJ")
    A(f"s_cmp_eq_u32 s{sMode}, 1")
    A("s_cbranch_scc1 AT_PUB")
    for r in range(64): A(f"v_accvgpr_write_b32 a{PARK+r}, v{CTX+r}")
    A(f"s_sub_u32 s{sBlk}, 15, s23")
    A(f"s_mov_b32 s{sN}, s{sNH}")
    A(f"s_mov_b32 s{sMode}, 1")
    A("s_waitcnt vmcnt(8)")
    A("s_branch AT_SEG")
    A("AT_PUB:")
    for qg in range(2): A(f"v_log_f32 v{28+qg}, v{LS+qg}")
    po_addr()
    for qg in range(2): A(f"v_sub_f32 v{28+qg}, v{28+qg}, v{NEGM+qg}")
    A(f"buffer_store_dwordx2 v[28:29], v2, s[12:15], s63 offen sc1")
    for f in range(16):
        A(f"buffer_store_dwordx4 {vr(CTX + 4*f, 4)}, v{vL16}, s[12:15], s60 offen offset:{(f % 4)*1024} sc1")
        if f % 4 == 3 and f < 15: A("s_add_u32 s60, s60, 4096")
        if f >= 2:
            for r in range(4): A(f"v_accvgpr_read_b32 v{CTX+4*(f-2)+r}, a{PARK+4*(f-2)+r}")
    A(f"s_mov_b32 s{sBlk}, s23")
    A("v_mov_b32 v2, 1")
    for r in range(8): A(f"v_accvgpr_read_b32 v{CTX+56+r}, a{PARK+56+r}")
    A("s_waitcnt vmcnt(0)")
    A(publish(67))
    A("s_branch AT_OPROJ")
    A("AT_LA:")
    po_addr()
    A(f"buffer_load_dwordx2 v[28:29], v2, s[12:15], s63 offen sc1")
    lastpv(lambda f: vr(CTX + 4*f, 4), "lasta")
    stamp(A, 0, 9)
    for qg in range(2): A(f"v_log_f32 v{2+qg}, v{LS+qg}")
    A("s_waitcnt vmcnt(8)")
    for qg in range(2):
        A(f"v_sub_f32 v{2+qg}, v{2+qg}, v{NEGM+qg}")
        A(f"v_sub_f32 v{2+qg}, v{2+qg}, v{28+qg}")
    for qg in range(2):
        A(f"v_exp_f32 v{28+qg}, v{2+qg}")
        A(f"v_exp_f32 v{2+qg}, -v{2+qg}")
    A("s_nop 0")
    for qg in range(2):
        A(f"v_add_f32 v{28+qg}, 1.0, v{28+qg}")
        A(f"v_add_f32 v{2+qg}, 1.0, v{2+qg}")
        A(f"v_mul_f32 v{2+qg}, v{2+qg}, v{LS+qg}")
    for qg in range(2):
        A(f"v_rcp_f32 v{28+qg}, v{28+qg}")
        A(f"v_rcp_f32 v{2+qg}, v{2+qg}")
    A("s_nop 0")
    n_ = 0
    sl = slot_list()
    for qg in range(2):
        if qg == 1: A("s_waitcnt vmcnt(8)")
        for T in range(8):
            for k in range(2):
                x = O + 4*(2*(2*T+k)+qg); d = CTX + 4*(8*qg+T) + 2*k
                t = TMP + 4*(n_ % 2); n_ += 1
                for h_ in range(2):
                    A(f"v_lshlrev_b32 v{t+2*h_}, 16, v{d+h_}")
                    A(f"v_and_b32 v{t+2*h_+1}, 0xffff0000, v{d+h_}")
                    A(f"v_pk_mul_f32 v[{x+2*h_}:{x+2*h_+1}], v[{x+2*h_}:{x+2*h_+1}], v[2:3] op_sel:[0,{qg}] op_sel_hi:[1,{qg}]")
                for h_ in range(2):
                    A(f"v_pk_fma_f32 v[{x+2*h_}:{x+2*h_+1}], v[{t+2*h_}:{t+2*h_+1}], v[28:29], v[{x+2*h_}:{x+2*h_+1}] op_sel:[0,{qg},0] op_sel_hi:[1,{qg},1]")
                for h_ in range(2):
                    A(f"v_cvt_pk_bf16_f32 v{d+h_}, v{x+2*h_}, v{x+2*h_+1}")
            if qg == 0: A(sl[T])
    A("AT_OPROJ:")
    stamp(A, 0, 10)
    A("v_lshrrev_b32 v2, 2, v1")
    A("v_bfe_u32 v3, v2, 1, 2")
    A("v_lshlrev_b32 v2, 7, v2")
    A("v_and_b32 v26, 3, v1")
    A("v_lshl_add_u32 v2, v26, 3, v2")
    A(f"v_add_u32 v2, s{sRR}, v2")
    for k in range(4):
        A(f"v_xor_b32 v26, {k}, v3")
        A(f"v_lshl_add_u32 v{ADO[k]}, v26, 5, v2")
    A(f"s_lshl_b32 s{sO0}, s{sBlk}, 3")
    A(f"s_add_u32 s{sO0}, s{sO0}, s20")
    A(f"s_lshl_b32 s{sO0}, s{sO0}, 4")
    A(f"s_add_u32 s{sO0}, s{sO0}, s21")
    A(f"s_mul_i32 s{sO0}, s{sO0}, 14336")
    A(f"s_add_u32 s{sO0}, s{sO0}, {WS_OP}")
    A(f"s_add_u32 s{sO1}, s{sO0}, {64*14336}")
    A("s_waitcnt vmcnt(16)")
    A("s_barrier")
    def rdo(rho):
        f, hh = rho // 2, rho % 2
        mt, T = f // 8, f % 8
        return f"ds_read_b64_tr_b16 {ar(RING + 4*(f % 16) + 2*hh, 2)}, v{ADO[mt]} offset:{T*4096 + hh*2048}"
    for rho in range(24): A(rdo(rho))
    mf = []; fixed = []; sc = []; va = []; vb = []
    n_ = 0
    busy = set(DG) | {1}
    def fit(gaps, lo):
        out = []; cnt = {}; gi = 0
        for l in lo:
            while gaps[gi] < l or cnt.get(gaps[gi], 0) >= 2: gi += 1
            out.append(gaps[gi]); cnt[gaps[gi]] = cnt.get(gaps[gi], 0) + 1
        return out
    SG = [11, 21, 47, 55]
    for ph in range(7):
        base = 64*ph
        ob = O + 32*(ph % 2)
        for mt in range(4):
            for qg in range(2):
                for T in range(8):
                    d = vr(ob + 4*(2*mt+qg), 4); f = 8*mt + T
                    mf.append((f"{MF} {d}, {ring(f)}, {vr(CTX + 4*(8*qg+T), 4)}, {'0' if T == 0 else d}", [(ph, 2*f), (ph, 2*f+1)]))
        dma = ph < 4
        stream_items(base, fixed, sc, dma=dma, mark=f"wo{ph+3}", delta=True, nocheck=True)
        war = lambda f: 16*((f-16)//8) + 8 + f % 8 if f >= 16 else 0
        og = [g for g in range(0, 40) if (g not in busy or not dma) and g not in SG]
        pos = spread(40, og)
        pos = fit(og, [max(pos[i], war((24+i)//2)) for i in range(40)])
        for i, g in enumerate(pos): fixed.append((base + g, It(rdo(24+i), "d", rid=(ph, 24+i))))
        if ph < 6:
            w = {0: "@wo_start+8", 1: "@wo_start+0"}.get(ph, f"@wo{ph+1}+0")
            fixed.append((base + 40, It(f"s_waitcnt vmcnt({w})", "s")))
            fixed.append((base + 41, It("s_barrier", "b")))
            tg = [g for g in range(42, 64) if g not in SG]
            tp = spread(24, tg)
            tp = fit(tg, [max(tp[i], war(32 + i//2)) for i in range(24)])
            for i, g in enumerate(tp): fixed.append((base + g, It(rdo(i), "d", rid=(ph+1, i))))
            los = [22, 22, max(pos[23], 22), pos[39]]
            his = [39, tp[16] - 1, 63, 63]
            for k in range(4): va.append(It(f"v_add_u32 v{ADO[k]}, s{sDel}, v{ADO[k]}", "v", base + los[k], hi=base + his[k]))
        for u in range(2):
            for qg in range(2):
                t = 40 + 4*(n_ % 4); n_ += 1
                for k in range(2):
                    x = ob + 4*(2*(2*u+k)+qg); lo = base + 16*(2*u+k) + 8*qg + 15
                    vb.append(It(f"v_cvt_pk_bf16_f32 v{t+2*k}, v{x}, v{x+1}", "v", lo))
                    vb.append(It(f"v_cvt_pk_bf16_f32 v{t+2*k+1}, v{x+2}, v{x+3}", "v", lo, hi=(lo + 100 if ph < 5 else None)))
                vb.append(It(f"buffer_store_dwordx4 v[{t}:{t+3}], v{vL16}, s[12:15], s{sO0+qg} offen offset:{(ph % 2)*2048 + u*1024} {OPT['st_op']}", "m", gapafter=1))
                if ph % 2 == 1 and u == 1: vb.append(It(f"s_add_u32 s{sO0+qg}, s{sO0+qg}, 4096", "s"))
    tailv = vb[-10:]; vb = vb[:-10]
    sched(A, mf, fixed, [sc, va, vb], carry=[((0, i), -30) for i in range(24)], name="oproj", reserve=[64*ph + g for ph in range(7) for g in SG])
    A("s_nop 7")
    for it in tailv: A(it.text)
    stamp(A, 0, 11)
    if OPT["stamp"]:
        A("s_waitcnt vmcnt(0)")
        stamp(A, 0, 12)
    A("s_endpgm")
    for o, b in stubs:
        A(f"{o}:")
        A("s_call_b64 s[34:35], AT_NEXT")
        A(f"s_branch {b}")
    for o, b in sigstubs:
        A(f"{o}:")
        A("v_mov_b32 v2, 1")
        A("s_mov_b64 exec, 1")
        A("buffer_atomic_add v2, off, s[72:75], s65")
        A("s_mov_b64 exec, -1")
        A(f"s_branch {b}")
    A("MN_END:")
    kernel_end(A, name, 512, 256, nsgpr=102)

def build(kernels):
    A = Asm()
    launches = {
        "main": "; @launch kernel=main_kernel grid=(256,1,1) block=(256,1,1) lds=139264",
        "red": "; @launch kernel=redln_kernel grid=(256,1,1) block=(448,1,1) lds=9216",
        "m1": "; @launch kernel=mlp1_kernel grid=(224,1,1) block=(256,1,1) lds=131072",
        "m2": "; @launch kernel=mlp2_kernel grid=(224,1,1) block=(256,1,1) lds=131072",
    }
    gens = {"main": gen_main, "red": gen_red, "m1": lambda A: gen_mlp(A, False), "m2": lambda A: gen_mlp(A, True)}
    head = HEADER + "\n".join(launches[k] for k in kernels) + "\n"
    A('.amdgcn_target "amdgcn-amd-amdhsa--gfx950"')
    for k in kernels: gens[k](A)
    A(".text")
    A("ALL_END:")
    A("s_endpgm")
    return head + A.text()

if __name__ == "__main__":
    for a in sys.argv[2:]:
        k, v = a.split("=")
        OPT[k] = {"True": True, "False": False}.get(v, v)
    open(sys.argv[1], "w").write(build(OPT["kernels"].split(",")))
```

```python
import math
from asmlib import *
from gen import *

WS_FLAG2 = 0x5A00000
F_HN = WS_FLAG2 + 1024*128
F_U  = F_HN + 256*128

def tile_ids(A, sS, sD, sC, t0):
    A(f"s_lshl_b32 s{sS}, s22, 4")
    A(f"s_lshl_b32 s{t0}, s23, 1")
    A(f"s_add_u32 s{sS}, s{sS}, s{t0}")
    A(f"s_bfe_u32 s{t0}, s2, 0x10003")
    A(f"s_add_u32 s{sS}, s{sS}, s{t0}")
    A(f"s_mul_i32 s{sC}, s{sS}, 37")
    A(f"s_lshr_b32 s{sC}, s{sC}, 8")
    A(f"s_mul_i32 s{t0}, s{sC}, 7")
    A(f"s_sub_u32 s{sD}, s{sS}, s{t0}")
    A(f"s_lshl_b32 s{sC}, s{sC}, 3")
    A(f"s_and_b32 s{t0}, s2, 7")
    A(f"s_add_u32 s{sC}, s{sC}, s{t0}")

def gen_tail(A, poll, one, sBlk, weave):
    sS, sD, sC, sW, sX, sL, sR, sF, sT = 24, 25, 26, 27, 28, 29, 30, 31, 32
    vL16, vF = 9, 25
    WAVE_LDS = 28672; RED = 4*WAVE_LDS
    def publish(flag): return one(f"buffer_store_dword v2, off, s[12:15], s{flag} sc1")
    A(f"s_load_dwordx2 s[76:77], s[0:1], {KA['x']}")
    A(f"s_load_dwordx4 s[4:7], s[0:1], {KA['w1']}")
    A(f"s_load_dwordx4 s[8:11], s[0:1], {KA['w2']}")
    A(f"s_load_dwordx2 s[68:69], s[0:1], {KA['out']}")
    tile_ids(A, sS, sD, sC, 60)
    A(f"s_mul_i32 s{sL}, s20, {WAVE_LDS}")
    A(f"s_lshl_b32 s{sR}, s{sBlk}, 4")
    A(f"s_add_u32 s{sR}, s{sR}, s21")
    A("v_lshrrev_b32 v2, 3, v1")
    A("v_and_b32 v3, 1, v1")
    A("v_bfe_u32 v4, v1, 1, 2")
    A("v_mul_u32_u24 v10, 3584, v2")
    A("v_lshl_add_u32 v10, v3, 4, v10")
    A("v_bfe_u32 v5, v1, 4, 1")
    A("v_xor_b32 v5, v5, v4")
    A("v_lshl_add_u32 v10, v5, 5, v10")
    A("v_xor_b32 v11, 64, v10")
    A(f"v_add_u32 v11, {8*3584 - 1024}, v11")
    A(f"v_add_u32 v12, {16*3584 - 2048}, v10")
    A(f"v_add_u32 v13, {16*3584 - 2048}, v11")
    A("v_lshlrev_b32 v14, 12, v2")
    A("v_lshl_add_u32 v14, v3, 4, v14")
    A("v_lshrrev_b32 v5, 4, v1")
    A("v_xor_b32 v5, v5, v4")
    A("v_lshl_add_u32 v14, v5, 5, v14")
    for i in range(1, 4): A(f"v_add_u32 v{14+i}, {i*(8*4096 - 1024)}, v14")
    A(f"s_mul_i32 s{sW}, s20, {256*3584}")
    A(f"s_lshl_b32 s60, s{sC}, 7")
    A(f"s_add_u32 s{sW}, s{sW}, s60")
    A("s_waitcnt lgkmcnt(0)")
    A("s_mov_b64 s[72:73], s[6:7]")
    A(f"s_mov_b32 s74, {1792*2}")
    A("s_mov_b32 s75, 0x20000")
    A("s_mov_b64 s[80:81], s[10:11]")
    A(f"s_mov_b32 s82, {2048*2}")
    A("s_mov_b32 s83, 0x20000")
    WB = 2048*1792*2
    A(f"s_cmp_lt_u32 s{sC}, 28")
    A(f"s_cselect_b32 s6, {WB}, 0")
    A("s_mov_b32 s7, 0x20000")
    A(f"s_cmp_lt_u32 s{sC}, 32")
    A(f"s_cselect_b32 s10, {WB}, 0")
    A("s_mov_b32 s11, 0x20000")
    A(f"s_mov_b32 s78, {2048*448*2}")
    A("s_mov_b32 s79, 0x20000")
    A(f"s_mov_b32 s70, {2048*448*2}")
    A("s_mov_b32 s71, 0x20000")
    A("s_barrier")
    def wstep(second, s_):
        v, d, row = (14, 8, 4096) if second else (10, 4, 3584)
        adv = 32*row + ((1024 - 256)*row if (not second and s_ == 7) else 0)
        out = [f"buffer_load_dwordx4 v{v+i}, s[{d}:{d+3}], s{sW} offen offset:{i*1024} lds" for i in range(4)]
        out[0] = f"s_add_u32 m0, s{sL}, {(s_ % 7)*4096}\ns_nop 0\n" + out[0]
        out[3] += f"\ns_add_u32 s{sW}, s{sW}, {adv}"
        return out
    def wread(second, s_):
        hh_ = 2048 if second else 512
        return [f"ds_read_b64_tr_b16 {ar(16*s_ + 4*t + 2*hh, 2)}, v{18+t} offset:{(s_ % 7)*4096 + hh*hh_}" for t in range(4) for hh in range(2)]
    def emit(l):
        for t in l: A(t)
    for s_ in range(4): emit(wstep(False, s_))
    A(f"s_lshl_b32 s{sF}, s{sBlk}, 2")
    A(f"s_add_u32 s60, s{sF}, s20")
    A("s_lshl_b32 s60, s60, 4")
    A("s_add_u32 s60, s60, s21")
    A("s_lshl_b32 s60, s60, 7")
    A(f"s_add_u32 s60, s60, {WS_FLAG2}")
    A("v_mov_b32 v2, 1")
    A("s_waitcnt vmcnt(@op_end+0)")
    A(publish(60))
    A("s_bfe_u32 s60, s21, 0x20001")
    A(f"s_add_u32 s{sF}, s{sF}, s60")
    A(f"s_lshl_b32 s{sF}, s{sF}, 11")
    A(f"s_add_u32 s{sF}, s{sF}, {WS_FLAG2}")
    R = []
    r = R.append
    r("s_lshl_b32 s60, s20, 6")
    r("v_add_u32 v24, s60, v1")
    r("v_and_b32 v4, 7, v1")
    r("v_bfe_u32 v5, v1, 3, 2")
    r("v_lshrrev_b32 v6, 5, v24")
    r("v_lshlrev_b32 v7, 10, v6")
    r("v_lshl_add_u32 v7, v5, 8, v7")
    r("v_lshl_add_u32 v7, v4, 4, v7")
    r("v_mul_u32_u24 v22, 896, v4")
    r("v_lshl_add_u32 v22, v6, 6, v22")
    r("v_lshl_add_u32 v22, v5, 3, v22")
    r("s_cmp_eq_u32 s20, 3\ns_cselect_b32 s60, 0x7fff0000, 0")
    r("v_add_u32 v8, s60, v7")
    r("v_add_u32 v8, 8192, v8")
    r("v_add_u32 v23, s60, v22")
    r(f"s_lshr_b32 s{sX}, s{sR}, 1")
    r(f"s_mul_i32 s{sX}, s{sX}, {16*14336}")
    r(f"s_and_b32 s60, s{sR}, 1")
    r("s_lshl_b32 s60, s60, 7")
    r(f"s_add_u32 s{sX}, s{sX}, s60")
    r(f"s_add_u32 s{sX}, s{sX}, {WS_OP}")
    r(f"s_mul_i32 s{sT}, s{sR}, {8*896}")
    r("v_lshrrev_b32 v3, 4, v1")
    r("v_bfe_u32 v26, v1, 2, 2")
    r("v_lshl_add_u32 v27, v3, 3, v26")
    r("v_and_b32 v3, 1, v3")
    r("v_lshlrev_b32 v3, 1, v3")
    r("v_lshrrev_b32 v26, 1, v26")
    r("v_or_b32 v3, v3, v26")
    r("v_lshlrev_b32 v27, 7, v27")
    r("v_and_b32 v26, 3, v1")
    r("v_lshl_add_u32 v27, v26, 3, v27")
    r(f"v_add_u32 v27, s{sL}, v27")
    for k in range(4):
        r(f"v_xor_b32 v26, {k}, v3")
        r(f"v_lshl_add_u32 v{18+k}, v26, 5, v27")
    r("v_and_b32 v3, 15, v1")
    r("v_lshlrev_b32 v3, 7, v3")
    weave(A, R, sum((wstep(False, s_) for s_ in range(4, 7)), []), 4)
    for k, (v, o) in enumerate(((22, 0), (22, 32), (23, 512), (23, 544))):
        A(f"buffer_load_dwordx2 v[{28+2*k}:{29+2*k}], v{v}, s[76:79], s{sT} offen offset:{o}")
    ld = f"buffer_load_dword v{vF}, v3, s[12:15], s{sF} offen sc1"
    A(ld)
    A("s_waitcnt vmcnt(0)")
    stamp(A, 2, 0)
    if OPT["stamp"]: A("v_and_b32 v3, 15, v1\nv_lshlrev_b32 v3, 7, v3")
    poll("TL_O", ld, [f"v_cmp_eq_u32 vcc, 1, v{vF}", "s_nop 1", "s_cmp_eq_u64 vcc, -1"], "TL_OK")
    stamp(A, 2, 1)
    PB = 64
    lds_ = []
    for h in range(16):
        lds_.append(f"buffer_load_dwordx4 {vr(PB + 8*h, 4)}, v7, s[12:15], s{sX} offen sc1")
        lds_.append(f"buffer_load_dwordx4 {vr(PB + 8*h + 4, 4)}, v8, s[12:15], s{sX} offen sc1\n;@mark p{h}\ns_add_u32 s{sX}, s{sX}, 14336")
    weave(A, lds_, [a + "\n" + b for a, b in zip(*[iter(sum((wread(False, s_) for s_ in range(7)), []))]*2)], 1)
    A("v_mov_b32 v26, 0x00003f80")
    A("v_mov_b32 v27, 0x3f800000")
    AC = 36
    for k in range(8):
        A(f"v_lshlrev_b32 v{AC+2*k}, 16, v{28+k}")
        A(f"v_and_b32 v{AC+1+2*k}, 0xffff0000, v{28+k}")
    A("s_waitcnt lgkmcnt(0)")
    side = sum((wstep(False, s_) for s_ in range(7, 14)), [])
    for h in range(16):
        for _ in range(2 if h < 14 else 0): A(side.pop(0))
        A(f"s_waitcnt vmcnt(@p{h}+0)")
        for k in range(8):
            A(f"v_dot2c_f32_bf16 v{AC+2*k}, v{PB+8*h+k}, v26")
            A(f"v_dot2c_f32_bf16 v{AC+1+2*k}, v{PB+8*h+k}, v27")
    stamp(A, 2, 2)
    A(f"v_add_u32 v26, {RED + 8192}, v22")
    A("s_nop 1")
    for k in range(8): A(f"v_cvt_pk_bf16_f32 v{28+k}, v{AC+2*k}, v{AC+1+2*k}")
    A("ds_write_b64 v26, v[28:29]")
    A("ds_write_b64 v26, v[30:31] offset:32")
    A("s_cmp_eq_u32 s20, 3")
    A("s_cbranch_scc1 TL_H1")
    A("ds_write_b64 v26, v[32:33] offset:512")
    A("ds_write_b64 v26, v[34:35] offset:544")
    A("TL_H1:")
    for k in range(8):
        A(f"v_lshlrev_b32 v{AC+2*k}, 16, v{28+k}")
        A(f"v_and_b32 v{AC+1+2*k}, 0xffff0000, v{28+k}")
    A(f"v_add_f32 v52, v{AC}, v{AC+1}")
    A(f"v_mul_f32 v53, v{AC}, v{AC}")
    for k in range(1, 16):
        if k > 1: A(f"v_add_f32 v52, v52, v{AC+k}")
        A(f"v_fmac_f32 v53, v{AC+k}, v{AC+k}")
    A("s_nop 1")
    for x in (52, 53): A(f"v_add_f32_dpp v{x}, v{x}, v{x} row_ror:8 row_mask:0xf bank_mask:0xf")
    crossrow(A, "v_add_f32", [52, 53], [54, 55])
    A("s_lshl_b32 s60, s20, 6")
    A(f"v_lshlrev_b32 v26, 3, v4")
    A(f"v_add_u32 v26, {RED + 16384}, v26")
    A("v_add_u32 v27, s60, v26")
    A("ds_write_b64 v27, v[52:53]")
    A("v_lshlrev_b32 v27, 4, v24")
    A(f"v_add_u32 v56, {RED}, v27")
    A("s_waitcnt lgkmcnt(0)")
    A("s_barrier")
    for w in range(4): A(f"ds_read_b64 v[{64+2*w}:{65+2*w}], v26 offset:{64*w}")
    A("ds_read_b128 v[72:75], v56 offset:8192")
    A("ds_read_b128 v[76:79], v56 offset:12288")
    A("s_cmp_eq_u32 s20, 3")
    A("s_cselect_b32 s60, 0x7fff0000, 0")
    A("s_add_u32 s60, s60, 4096")
    A("v_add_u32 v57, s60, v27")
    A(f"s_add_u32 s{sT}, s{sT}, {WS_H}")
    A("s_waitcnt lgkmcnt(2)")
    for w in range(1, 4):
        A(f"v_add_f32 v64, v64, v{64+2*w}")
        A(f"v_add_f32 v65, v65, v{65+2*w}")
    A(f"v_mul_f32 v64, {hex(f2u(1.0/448))}, v64")
    A(f"v_mul_f32 v65, {hex(f2u(1.0/448))}, v65")
    A("v_fma_f32 v65, -v64, v64, v65")
    A("v_max_f32 v65, 0, v65")
    A(f"v_add_f32 v66, {hex(f2u(1e-5))}, v65")
    A("v_rsq_f32 v66, v66")
    A("s_waitcnt lgkmcnt(0)")
    A(f"buffer_store_dwordx4 v[72:75], v27, s[12:15], s{sT} offen sc1")
    A("v_mul_f32 v67, v66, v66")
    A("v_mul_f32 v67, v67, v65")
    A(f"v_add_f32 v67, {hex(f2u(1e-5))}, v67")
    A("v_rsq_f32 v67, v67")
    A(f"buffer_store_dwordx4 v[76:79], v57, s[12:15], s{sT} offen sc1")
    A("v_mul_f32 v66, v66, v67")
    for k in range(16):
        A(f"v_sub_f32 v{AC+k}, v{AC+k}, v64")
        A(f"v_mul_f32 v{AC+k}, v{AC+k}, v66")
    for k in range(8): A(f"v_cvt_pk_bf16_f32 v{28+k}, v{AC+2*k}, v{AC+1+2*k}")
    A("v_lshlrev_b32 v26, 9, v6")
    A("v_lshl_add_u32 v26, v5, 6, v26")
    A("v_lshl_add_u32 v26, v4, 1, v26")
    A(f"v_add_u32 v26, {RED}, v26")
    for k in range(8):
        off = (k >> 2)*4096 + ((k >> 1) & 1)*256 + (k & 1)*32
        A(f"ds_write_b16 v26, v{28+k} offset:{off}")
        A(f"ds_write_b16_d16_hi v26, v{28+k} offset:{off+16}")
    A("v_lshrrev_b32 v26, 4, v24")
    A("v_lshlrev_b32 v26, 10, v26")
    A("v_and_b32 v27, 15, v1")
    A("v_lshl_add_u32 v26, v27, 4, v26")
    A("s_cmp_eq_u32 s20, 3")
    A("s_cselect_b32 s60, 0x7fff0000, 0")
    A("v_add_u32 v27, s60, v26")
    A("v_add_u32 v27, 16384, v27")
    A(f"s_lshr_b32 s60, s{sR}, 2")
    A(f"s_mul_i32 s60, s60, {28*1024}")
    A(f"s_and_b32 s61, s{sR}, 3")
    A("s_lshl_b32 s61, s61, 8")
    A("s_add_u32 s60, s60, s61")
    A(f"s_add_u32 s60, s60, {WS_HN}")
    A("s_waitcnt lgkmcnt(0)")
    A("s_barrier")
    A("ds_read_b128 v[72:75], v56")
    A("ds_read_b128 v[76:79], v56 offset:4096")
    A(f"s_lshl_b32 s{sF}, s20, 12")
    A(f"s_add_u32 s{sF}, s{sF}, {F_HN}")
    A("v_and_b32 v3, 31, v1")
    A("v_lshlrev_b32 v3, 7, v3")
    A("s_waitcnt lgkmcnt(0)")
    A("buffer_store_dwordx4 v[72:75], v26, s[12:15], s60 offen sc1")
    A("buffer_store_dwordx4 v[76:79], v27, s[12:15], s60 offen sc1")
    A(ld)
    A("s_waitcnt vmcnt(@w0_13+0)")
    emit(sum((wread(False, s_) for s_ in range(7, 9)), []))
    A("s_waitcnt lgkmcnt(0)")
    for s_ in (14, 15): emit(wstep(False, s_))
    emit(sum((wread(False, s_) for s_ in range(9, 14)), []))
    A(f"s_lshl_b32 s60, s{sR}, 7")
    A(f"s_add_u32 s60, s60, {F_HN}")
    A("v_mov_b32 v2, 1")
    A("s_waitcnt vmcnt(@hn_st+0)")
    A("s_barrier")
    A("s_cmp_eq_u32 s20, 0")
    A("s_cbranch_scc0 TL_P1")
    A(publish(60))
    A("TL_P1:")
    stamp(A, 2, 3)
    if OPT["stamp"]: A("v_and_b32 v3, 31, v1\nv_lshlrev_b32 v3, 7, v3")
    A(f"s_cmp_ge_u32 s{sC}, 32")
    A("s_cbranch_scc1 MN_END")
    A("s_waitcnt vmcnt(0)")
    emit(sum((wread(False, s_) for s_ in (14, 15)), []))
    A(f"s_mul_i32 s{sW}, s20, {14*32*4096}")
    A(f"s_lshl_b32 s60, s{sC}, 7")
    A(f"s_add_u32 s{sW}, s{sW}, s60")
    ACC, ACT = 32, 96
    def w2_addr():
        A("v_lshrrev_b32 v27, 2, v1")
        A("v_bfe_u32 v26, v27, 1, 2")
        A("v_lshlrev_b32 v27, 7, v27")
        A("v_and_b32 v28, 3, v1")
        A("v_lshl_add_u32 v27, v28, 3, v27")
        A(f"v_add_u32 v27, s{sL}, v27")
        for k in range(4):
            A(f"v_xor_b32 v28, {k}, v26")
            A(f"v_lshl_add_u32 v{18+k}, v28, 5, v27")
    A(f"s_cmp_ge_u32 s{sC}, 28")
    A("s_cbranch_scc1 TL_NOM1")
    for t in range(4):
        A(f"s_add_u32 s60, s20, {t}")
        A("s_and_b32 s60, s60, 3")
        A("s_lshl_b32 s60, s60, 10")
        A(f"v_add_u32 v{4+t}, s60, v{vL16}")
    A(f"s_mul_i32 s{sX}, s20, {8*28*1024}")
    A(f"s_lshl_b32 s60, s{sD}, 12")
    A(f"s_add_u32 s{sX}, s{sX}, s60")
    A(f"s_add_u32 s{sX}, s{sX}, {WS_HN}")
    A("v_lshrrev_b32 v26, 4, v1")
    A("v_lshlrev_b32 v26, 3, v26")
    A(f"s_lshl_b32 s60, s{sC}, 7")
    for t in range(4): A(f"buffer_load_dwordx2 v[{224+2*t}:{225+2*t}], v26, s[72:75], s60 offen offset:{32*t}")
    chk = [f"v_cmp_eq_u32 vcc, 1, v{vF}", "s_nop 1", "s_cmp_eq_u64 vcc, -1"]
    def mm(second, s_, slot):
        for wt in range(4):
            for at in (range(4) if wt % 2 == 0 else range(3, -1, -1)):
                own, oth = (wt, at) if second else (at, wt)
                d = vr(ACC + 16*own + 4*oth, 4)
                w_ = ar(16*s_ + 4*wt, 4); a_ = vr(ACT + 16*slot + 4*at, 4)
                x, y = (a_, w_) if second else (w_, a_)
                A(f"{MF} {d}, {x}, {y}, {'0' if s_ == 0 else d}")
    for half in range(2):
        poll(f"TL_N{half}", ld, chk, f"TL_NK{half}")
        stamp(A, 2, 4 + 2*half)
        if OPT["stamp"]: A("v_and_b32 v3, 31, v1\nv_lshlrev_b32 v3, 7, v3")
        for s_ in range(8):
            for t in range(4): A(f"buffer_load_dwordx4 {vr(ACT + 16*s_ + 4*t, 4)}, v{4+t}, s[12:15], s{sX} offen sc1")
            A(f"s_add_u32 s{sX}, s{sX}, {28*1024 + (24*28*1024 if s_ == 7 else 0)}")
        if half == 0:
            A(f"s_add_u32 s{sF}, s{sF}, {128*128}")
            A(ld)
            A("s_waitcnt lgkmcnt(0)")
            side = []
        else:
            side = [wstep(True, s_) for s_ in range(7)]
        for s_ in range(8):
            A(f"s_waitcnt vmcnt(@a{half}_{s_}+0)")
            mm(False, 8*half + s_, s_)
            if side: emit(side.pop(0))
        if half == 0: A("s_waitcnt vmcnt(0)")
        stamp(A, 2, 5 + 2*half)
        if OPT["stamp"]: A("v_and_b32 v3, 31, v1\nv_lshlrev_b32 v3, 7, v3")
    for t in range(1, 4):
        A(f"v_lshrrev_b32 v26, 10, v{4+t}")
        A("v_mul_u32_u24 v26, 12288, v26")
        A(f"v_add_u32 v26, v26, v{vL16}")
        A(f"v_add_u32 v{4+t}, {RED + (t-1)*4096}, v26")
    A(f"s_mul_i32 s60, s20, 12288")
    A(f"s_add_u32 s60, s60, {RED}")
    A(f"v_add_u32 v4, s60, v{vL16}")
    for t in range(1, 4):
        for o in range(4): A(f"ds_write_b128 v{4+t}, {vr(ACC + 16*t + 4*o, 4)} offset:{o*1024}")
    for k in range(8):
        A(f"v_lshlrev_b32 v{ACT+2*k}, 16, v{224+k}")
        A(f"v_and_b32 v{ACT+1+2*k}, 0xffff0000, v{224+k}")
    for x in range(16): A(f"v_add_f32 v{ACC+x}, v{ACC+x}, v{ACT+x}")
    c1 = -2.0*math.sqrt(2/math.pi)*math.log2(math.e); c3 = c1*0.044715
    A(f"s_mov_b32 s61, {hex(f2u(c3))}")
    A(f"v_mov_b32 v26, {hex(f2u(c1))}")
    A(f"s_mul_i32 s60, s{sC}, {2*28*1024}")
    A(f"s_lshl_b32 s62, s{sD}, 2")
    A("s_add_u32 s62, s62, s20")
    A("s_lshl_b32 s62, s62, 10")
    A("s_add_u32 s60, s60, s62")
    A(f"s_add_u32 s60, s60, {WS_U}")
    A(f"s_add_u32 s62, s60, {28*1024}")
    A("s_waitcnt lgkmcnt(0)")
    A("s_barrier")
    for t in range(12): A(f"ds_read_b128 {vr(ACC + 16 + 4*t, 4)}, v4 offset:{t*1024}")
    for t in range(3):
        A(f"s_waitcnt lgkmcnt({8-4*t})")
        for x in range(0, 16, 2): A(f"v_pk_add_f32 v[{ACC+x}:{ACC+x+1}], v[{ACC+x}:{ACC+x+1}], v[{ACC+16+16*t+x}:{ACC+17+16*t+x}]")
    G_ = ACC + 16
    for x in range(16): A(f"v_mul_f32 v{G_+x}, v{ACC+x}, v{ACC+x}")
    for x in range(16): A(f"v_fma_f32 v{G_+x}, v{G_+x}, s61, v26")
    for x in range(16): A(f"v_mul_f32 v{G_+x}, v{G_+x}, v{ACC+x}")
    for x in range(16): A(f"v_exp_f32 v{G_+x}, v{G_+x}")
    for x in range(16): A(f"v_add_f32 v{G_+x}, 1.0, v{G_+x}")
    for x in range(16): A(f"v_rcp_f32 v{G_+x}, v{G_+x}")
    for x in range(16): A(f"v_mul_f32 v{ACC+x}, v{ACC+x}, v{G_+x}")
    for k in range(8): A(f"v_cvt_pk_bf16_f32 v{G_+k}, v{ACC+2*k}, v{ACC+2*k+1}")
    A(f"buffer_store_dwordx4 {vr(G_, 4)}, v{vL16}, s[12:15], s60 offen sc1")
    A(f"buffer_store_dwordx4 {vr(G_+4, 4)}, v{vL16}, s[12:15], s62 offen sc1")
    w2_addr()
    A("s_waitcnt vmcnt(2)")
    emit(sum((wread(True, s_) for s_ in range(7)), []))
    A(f"s_mul_i32 s60, s{sD}, 28")
    A(f"s_add_u32 s60, s60, s{sC}")
    A("s_lshl_b32 s60, s60, 7")
    A(f"s_add_u32 s60, s60, {F_U}")
    A("v_mov_b32 v2, 1")
    A("s_waitcnt vmcnt(0)")
    A("s_barrier")
    A("s_cmp_eq_u32 s20, 0")
    A("s_cbranch_scc0 TL_M2")
    A(publish(60))
    A("s_branch TL_M2")
    A("TL_NOM1:")
    A("s_waitcnt lgkmcnt(0)")
    for s_ in range(7): emit(wstep(True, s_))
    w2_addr()
    A("s_waitcnt vmcnt(0)")
    emit(sum((wread(True, s_) for s_ in range(7)), []))
    A("TL_M2:")
    stamp(A, 2, 8)
    A("s_waitcnt lgkmcnt(0)")
    for s_ in range(7, 14): emit(wstep(True, s_))
    A(f"s_mul_i32 s{sF}, s{sD}, 28")
    A("s_mul_i32 s60, s20, 7")
    A(f"s_add_u32 s{sF}, s{sF}, s60")
    A(f"s_lshl_b32 s{sF}, s{sF}, 7")
    A(f"s_add_u32 s{sF}, s{sF}, {F_U}")
    A("v_min_u32 v3, 6, v1")
    A("v_lshlrev_b32 v3, 7, v3")
    A(ld)
    A(f"s_mul_i32 s{sX}, s20, {14*28*1024}")
    A(f"s_lshl_b32 s60, s{sD}, 12")
    A(f"s_add_u32 s{sX}, s{sX}, s60")
    A(f"s_add_u32 s{sX}, s{sX}, {WS_U}")
    A(f"s_lshl_b32 s60, s{sC}, 6")
    A("s_lshl_b32 s61, s20, 4")
    A("s_add_u32 s60, s60, s61")
    A("v_lshrrev_b32 v26, 3, v1")
    A("v_add_u32 v27, s60, v26")
    A("v_lshlrev_b32 v28, 1, v27")
    A("v_mul_u32_u24 v8, 896, v27")
    A("v_and_b32 v27, 7, v1")
    A("v_lshl_add_u32 v8, v27, 4, v8")
    A(f"s_lshl_b32 s60, s{sD}, 7")
    A("v_add_u32 v8, s60, v8")
    A(f"v_add_u32 v7, {8*896}, v8")
    A("v_lshlrev_b32 v6, 1, v27")
    A("v_xor_b32 v6, v6, v26")
    A("v_lshlrev_b32 v6, 4, v6")
    A("v_lshl_add_u32 v6, v27, 9, v6")
    A("s_lshl_b32 s60, s20, 12")
    A("v_add_u32 v6, s60, v6")
    A("v_xor_b32 v4, 128, v6")
    A("s_lshl_b32 s60, s20, 14")
    A("v_and_b32 v5, 32, v1")
    A(f"v_xor_b32 v5, v5, v{vL16}")
    A("v_add_u32 v5, s60, v5")
    for k in range(1, 4): A(f"v_xor_b32 v{28+k}, {64*k}, v5")
    A("buffer_load_ushort v22, v28, s[80:83], 0 offen")
    A("buffer_load_ushort v23, v28, s[80:83], 0 offen offset:16")
    A("s_waitcnt vmcnt(0)")
    emit(sum((wread(True, s_) for s_ in range(7, 14)), []))
    poll("TL_U", ld, chk, "TL_UK")
    stamp(A, 2, 9)
    NSL = 10
    def aload(s_):
        for t in range(4): A(f"buffer_load_dwordx4 {vr(ACT + 16*(s_ % NSL) + 4*t, 4)}, v{vL16}, s[12:15], s{sX} offen offset:{t*1024} sc1")
        A(f";@mark b{s_}")
        A(f"s_add_u32 s{sX}, s{sX}, {28*1024}")
    for s_ in range(NSL): aload(s_)
    A("s_waitcnt lgkmcnt(0)")
    A(f"s_mov_b32 s61, {WS_H}")
    for s_ in range(14):
        A(f"s_waitcnt vmcnt(@b{s_}+0)")
        mm(True, s_, s_ % NSL)
        if s_ + NSL < 14: aload(s_ + NSL)
        if s_ == 4:
            A("buffer_load_dwordx4 v[12:15], v8, s[12:15], s61 offen sc1")
            A("buffer_load_dwordx4 v[16:19], v7, s[12:15], s61 offen sc1")
    stamp(A, 2, 10)
    A("s_barrier")
    A("s_nop 6")
    for t in range(16): A(f"ds_write_b128 v{[5, 29, 30, 31][t % 4]}, {vr(ACC + 4*t, 4)} offset:{t*1024}")
    A("s_waitcnt vmcnt(0)")
    for i in range(2):
        A(f"v_lshlrev_b32 v{22+i}, 16, v{22+i}")
        for k in range(4):
            A(f"v_lshlrev_b32 v{ACT+8*i+2*k}, 16, v{12+4*i+k}")
            A(f"v_and_b32 v{ACT+8*i+2*k+1}, 0xffff0000, v{12+4*i+k}")
        for k in range(8): A(f"v_add_f32 v{ACT+8*i+k}, v{ACT+8*i+k}, v{22+i}")
    A("s_waitcnt lgkmcnt(0)")
    A("s_barrier")
    for w in range(4):
        for i in range(2):
            for q in range(2):
                A(f"ds_read_b128 {vr(ACC + 16*w + 8*i + 4*q, 4)}, v{[6, 4][i]} offset:{w*16384 + q*256}")
    for w in range(4):
        A(f"s_waitcnt lgkmcnt({12-4*w})")
        for x in range(0, 16, 2): A(f"v_pk_add_f32 v[{ACT+x}:{ACT+x+1}], v[{ACT+x}:{ACT+x+1}], v[{ACC+16*w+x}:{ACC+16*w+x+1}]")
    for k in range(8): A(f"v_cvt_pk_bf16_f32 v{ACC+k}, v{ACT+2*k}, v{ACT+2*k+1}")
    A(f"buffer_store_dwordx4 {vr(ACC, 4)}, v8, s[68:71], 0 offen")
    A(f"buffer_store_dwordx4 {vr(ACC+4, 4)}, v7, s[68:71], 0 offen")
    stamp(A, 2, 11)
    A("s_endpgm")
```

```python
import sys, math, struct
from asmlib import *
import gen as G
from gen import *
from tail import *

WS_Q = 0x5200000
OPT.update(dict(nh0=13, stp=18, sig=200, chk=378, st_kv='sc1', novw=False, rtc=False, qst=False, ts=65536, hp=0, noxn=False, st0=10, pfw=True, slp=2, nost=False, pfq=True, kernels="main", fuse=True))

def weave(A, main, side, every, start=0):
    side = list(side); k = 0
    for i, t in enumerate(main):
        A(t)
        if side and i >= start and (i - start) % every == every - 1: A(side.pop(0))
    for t in side: A(t)

class Rec:
    def __init__(self): self.L = []
    def __call__(self, s): self.L.append(s)

def gen_main(A):
    name = "main_kernel"
    KTS = int(OPT["ts"]); KHS = 32*KTS + int(OPT["hp"]); KVB = 0x6000000
    vOff, vWq, vLin, vWo, vRd, vL16 = 4, 5, 6, 7, 8, 9
    NEGM, LS, TS, TMP, vThr, vFlag, vSt, vL4 = 10, 12, 14, 16, 24, 25, 30, 31
    def one(t): return 's_mov_b64 exec, 1\n' + t + '\ns_mov_b64 exec, -1'
    P = [32, 48]; S = 64; C = 96; O = 128; CTX = 64
    ADQ = [10, 11, 12, 13, 14, 15, 28, 29]; ADO = [32, 33, 34, 35]
    RING, Q, PARK = 0, 64, 192
    def xn(ks, qg):
        f = 2*ks + qg
        return 192 + 4*f if f < 16 else 128 + 4*(f - 16)
    gC, gW, rC, rW = 32, 36, 40, 44
    sOff, sA, sB, sInc, sCnt, sSec, sDs, sRW, sRR, sDel = 24, 25, 26, 27, 28, 29, 30, 31, 32, 33
    sSt, sSB, sSO = 38, 39, 47
    sBlk, sT0, sN, sRem, sTile, sThr, sMode = 40, 41, 42, 43, 44, 45, 46
    sNH, sST0, sSN, sKV, sPair, sFl, sO0, sO1, sSpin = 50, 52, 53, 54, 55, 56, 57, 58, 59
    sX0, sX1 = 48, 49
    sSplit, sKVp, vKV = 3, 64, 31
    kernel_begin(A, name)
    A("s_cmp_ge_u32 s2, 256")
    A("s_cbranch_scc1 MN_END")
    A("s_load_dwordx4 s[76:79], s[0:1], 0")
    A("s_load_dwordx4 s[80:83], s[0:1], 24")
    A(f"s_load_dwordx4 s[16:19], s[0:1], {KA['dbg']}")
    A(f"s_load_dwordx2 s[68:69], s[0:1], {KA['wq']}")
    A(f"s_load_dwordx2 s[70:71], s[0:1], {KA['wo']}")
    A(f"s_load_dwordx2 s[84:85], s[0:1], {KA['w1']}")
    A(f"s_load_dwordx2 s[86:87], s[0:1], {KA['w2']}")
    touch_code(A, 1, "MN_END", vtmp=26, vdst=27, sb=96)
    A("v_lshrrev_b32 v2, 6, v0")
    A("v_and_b32 v1, 63, v0")
    A("v_readfirstlane_b32 s20, v2")
    A("s_and_b32 s21, s2, 7")
    A("s_lshl_b32 s21, s21, 1")
    A("s_bfe_u32 s22, s2, 0x10003")
    A("s_add_u32 s21, s21, s22")
    A("s_bfe_u32 s22, s2, 0x10004")
    A("s_lshr_b32 s23, s2, 5")
    A("v_lshrrev_b32 v2, 3, v1")
    A("v_lshrrev_b32 v3, 4, v1")
    A("v_and_b32 v16, 7, v1")
    A("s_lshl_b32 s60, s23, 7")
    A("s_lshl_b32 s61, s20, 5")
    A("s_add_u32 s60, s60, s61")
    A("v_add_u32 v2, s60, v2")
    A("v_lshlrev_b32 v2, 11, v2")
    A("v_xor_b32 v17, v16, v3")
    A(f"v_lshl_add_u32 v{gC}, v17, 4, v2")
    A(f"v_xor_b32 v{gC+1}, 64, v{gC}")
    A(f"v_add_u32 v{gC+2}, {2*(8*2048-1024)}, v{gC}")
    A(f"v_add_u32 v{gC+3}, {3*(8*2048-1024)}, v{gC+1}")
    A(f"v_add_u32 v{gC+1}, {8*2048-1024}, v{gC+1}")
    A("s_lshl_b32 s60, s20, 4")
    A("v_add_u32 v2, s60, v3")
    A("v_lshlrev_b32 v2, 13, v2")
    A("s_lshl_b32 s60, s21, 9")
    A("v_add_u32 v2, s60, v2")
    A("v_and_b32 v16, 1, v1")
    A("v_lshl_add_u32 v2, v16, 4, v2")
    A("v_bfe_u32 v16, v1, 1, 3")
    A("v_xor_b32 v16, v16, v3")
    A("v_lshrrev_b32 v17, 2, v16")
    A("v_lshl_add_u32 v2, v17, 8, v2")
    A("v_and_b32 v17, 3, v16")
    A(f"v_lshl_add_u32 v{gW}, v17, 5, v2")
    A(f"v_xor_b32 v{gW+2}, 256, v{gW}")
    A(f"v_add_u32 v{gW+1}, {4*8192-1024}, v{gW}")
    A(f"v_add_u32 v{gW+3}, {3*(4*8192-1024)}, v{gW+2}")
    A(f"v_add_u32 v{gW+2}, {2*(4*8192-1024)}, v{gW+2}")
    A("s_lshl_b32 s27, s20, 12")
    A("s_mov_b32 s24, 0")
    A("s_mov_b32 s25, 0")
    A("s_lshl_b32 s62, s2, 3")
    A("s_lshl_b32 s63, s20, 1")
    A("s_add_u32 s62, s62, s63")
    A("s_mul_i32 s63, s62, 896")
    A("v_lshrrev_b32 v18, 2, v1")
    A("v_and_b32 v19, 3, v1")
    A("v_lshlrev_b32 v20, 6, v18")
    A("v_lshl_add_u32 v20, v19, 3, v20")
    A("v_cmp_gt_u32 vcc, 56, v1")
    A("v_mov_b32 v21, 0x7fff0000")
    A("s_mov_b32 m0, s27")
    A("v_cndmask_b32 v20, v21, v20, vcc")
    A("s_waitcnt lgkmcnt(0)")
    srd(A, 4, 78, 2048*1024*2)
    A("s_cmp_eq_u32 s22, 0")
    A("s_cselect_b32 s8, s80, s82")
    A("s_cselect_b32 s9, s81, s83")
    A(f"s_mov_b32 s10, {1024*4096*2}")
    A("s_mov_b32 s11, 0x20000")
    A(f"s_mov_b32 s78, {2048*448*2}")
    A("s_mov_b32 s79, 0x20000")
    def dma_c(i): return f"buffer_load_dwordx4 v{gC+i}, s[4:7], s24 offen offset:{i*1024} lds"
    def dma_w(i): return f"buffer_load_dwordx4 v{gW+i}, s[8:11], s25 offen offset:{i*1024} lds"
    def adv_c(par): return f"s_add_u32 s24, s24, {(1 << 21) if par == 0 else (128-(1 << 21)) & 0xffffffff}"
    def adv_w(par): return f"s_add_u32 s25, s25, {128 if par == 0 else 524288-128}"
    XR = 64
    for k, o in enumerate((0, 32, 896, 928)):
        A(f"buffer_load_dwordx2 v[{XR+2*k}:{XR+2*k+1}], v20, s[76:79], s63 offen offset:{o}")
    side = []
    for p in range(4):
        for i in range(4): side.append(dma_c(i) + (f"\ns_add_u32 m0, s27, {p*32768+16384}\n" + adv_c(p & 1) if i == 3 else ""))
        for i in range(4): side.append(dma_w(i) + (f"\ns_add_u32 m0, s27, {(p+1)*32768}\n" + adv_w(p & 1) if i == 3 else ""))
    for t in side[:8]: A(t)
    srd(A, 12, 18, WS_SIZE)
    srd(A, 72, 16, 256)
    stamp(A, 0, 0)
    R = Rec()
    R("s_lshr_b32 s64, s62, 4")
    R("s_mul_i32 s64, s64, 14336")
    R("s_and_b32 s65, s2, 1")
    R("s_lshl_b32 s65, s65, 7")
    R("s_add_u32 s64, s64, s65")
    R(f"s_add_u32 s63, s64, {WS_XN}")
    R("s_lshl_b32 s65, s20, 5")
    R("s_add_u32 s65, s65, 0x20000")
    R("v_lshl_add_u32 v22, v1, 7, s65")
    R("v_lshlrev_b32 v18, 4, v0")
    R("v_add_u32 v18, 0x20000, v18")
    R("v_lshrrev_b32 v19, 3, v0")
    R("v_lshlrev_b32 v19, 8, v19")
    R("v_and_b32 v20, 7, v0")
    R("v_lshl_add_u32 v19, v20, 4, v19")
    R("v_add_u32 v20, 8192, v19")
    R("v_cmp_gt_u32 vcc, 192, v0\ns_nop 1\nv_cndmask_b32 v20, v21, v20, vcc")
    R("v_lshrrev_b32 v3, 4, v1")
    R("v_and_b32 v2, 15, v1")
    R("s_lshr_b32 s60, s20, 1")
    R("s_lshl_b32 s60, s60, 13")
    R("v_lshlrev_b32 v16, 7, v2")
    R("v_add_u32 v16, s60, v16")
    R("v_lshrrev_b32 v17, 1, v2")
    R("v_xor_b32 v17, v17, v3")
    R(f"v_lshl_add_u32 v{rC}, v17, 4, v16")
    R(f"v_xor_b32 v{rC+1}, 64, v{rC}")
    R(f"v_add_u32 v{rC+2}, 0x10000, v{rC}")
    R(f"v_add_u32 v{rC+3}, 0x10000, v{rC+1}")
    R("v_bfe_u32 v16, v1, 2, 2")
    R("v_lshl_add_u32 v17, v3, 3, v16")
    R("v_lshlrev_b32 v17, 8, v17")
    R("v_and_b32 v23, 3, v1")
    R("v_lshl_add_u32 v17, v23, 3, v17")
    R("v_add_u32 v17, 16384, v17")
    R("v_and_b32 v23, 1, v3")
    R("v_lshl_add_u32 v16, v23, 2, v16")
    R("s_and_b32 s60, s20, 1")
    R("s_lshl_b32 s60, s60, 2")
    R("v_xor_b32 v16, s60, v16")
    for nt in range(4):
        R(f"v_xor_b32 v23, {nt}, v16")
        R(f"v_lshl_add_u32 v{rW+nt}, v23, 5, v17")
        R(f"v_add_u32 v{rW+4+nt}, 0x10000, v{rW+nt}")
    R("s_lshl_b32 s60, s20, 4")
    R("v_add_u32 v2, s60, v2")
    R("v_lshlrev_b32 v16, 2, v3")
    R(f"v_sub_u32 v{vThr}, v2, v16")
    R(f"v_lshlrev_b32 v{vL16}, 4, v1")
    R(f"v_lshlrev_b32 v{vL4}, 2, v1")
    R("s_lshl_b32 s60, s20, 10")
    R(f"v_add_u32 v{vLin}, s60, v{vL16}")
    R(f"s_mul_i32 s{sKV}, s21, {KHS}")
    R(f"s_add_u32 s{sKV}, s{sKV}, {KVB}")
    R(f"s_mul_i32 s60, s23, {2*KTS}")
    R(f"s_add_u32 s60, s60, s{sKV}")
    R("s_lshr_b32 s61, s20, 1")
    R(f"s_mul_i32 s61, s61, {KTS}")
    R("s_add_u32 s60, s60, s61")
    R("s_and_b32 s61, s20, 1")
    R("s_lshl_b32 s65, s61, 12")
    R("s_lshl_b32 s61, s61, 14")
    R("s_add_u32 s61, s61, 32768")
    R(f"s_cmp_eq_u32 s22, 0\ns_cselect_b32 s61, s65, s61")
    R("s_lshl_b32 s65, s22, 1")
    R(f"s_lshl_b32 s{sSB}, 2048, s65")
    R(f"s_lshr_b32 s{sSO}, 8192, s65")
    R("s_add_u32 s60, s60, s61")
    R(f"v_add_u32 v{vSt}, s60, v{vL16}")
    R("v_lshrrev_b32 v2, 5, v1")
    R("s_lshl_b32 s60, s20, 1")
    R("v_add_u32 v2, s60, v2")
    R("v_bfe_u32 v16, v1, 1, 4")
    R("v_xor_b32 v16, v16, v2")
    R(f"v_lshlrev_b32 v{vWq}, 13, v2")
    R(f"v_lshl_add_u32 v{vWq}, v16, 5, v{vWq}")
    R("v_and_b32 v16, 1, v1")
    R(f"v_lshl_add_u32 v{vWq}, v16, 4, v{vWq}")
    R("s_lshl_b32 s60, s21, 9")
    R(f"v_add_u32 v{vWq}, s60, v{vWq}")
    R("v_lshrrev_b32 v2, 3, v1")
    R("s_lshl_b32 s60, s21, 8")
    R("s_lshl_b32 s61, s20, 3")
    R("s_add_u32 s60, s60, s61")
    R("v_add_u32 v2, s60, v2")
    R(f"v_mul_u32_u24 v{vWo}, 896, v2")
    R(f"v_lshl_add_u32 v{vWo}, v16, 4, v{vWo}")
    R("v_bfe_u32 v2, v1, 1, 2")
    R("v_xor_b32 v2, v2, v3")
    R(f"v_lshl_add_u32 v{vWo}, v2, 5, v{vWo}")
    R("v_lshrrev_b32 v2, 2, v1")
    R("v_and_b32 v16, 7, v2")
    R("v_lshlrev_b32 v2, 9, v2")
    R("v_and_b32 v17, 3, v1")
    R("v_lshl_add_u32 v2, v17, 3, v2")
    for k in range(8):
        R(f"v_xor_b32 v17, {k}, v16")
        R(f"v_lshl_add_u32 v{ADQ[k]}, v17, 5, v2")
    R("s_lshl_b32 s60, s23, 1")
    R(f"s_sub_i32 s{sNH}, {OPT['nh0']}, s60")
    R(f"s_max_i32 s{sNH}, s{sNH}, 0")
    R("s_sub_u32 s61, 15, s23")
    R("s_sub_u32 s65, 32, s60")
    R(f"s_sub_u32 s65, s65, s{sNH}")
    R("s_add_u32 s60, s60, 2")
    R(f"s_cmp_eq_u32 s22, 0\ns_cselect_b32 s{sBlk}, s23, s61\ns_cselect_b32 s{sT0}, 0, s{sNH}\ns_cselect_b32 s{sN}, s60, s65\ns_cselect_b32 s{sMode}, 3, 2")
    R(f"s_cmp_eq_u32 s{sNH}, 0\ns_cmov_b32 s{sMode}, 0")
    R(f"s_lshl_b32 s{sPair}, s21, 3")
    R(f"s_add_u32 s{sPair}, s{sPair}, s23")
    R(f"s_lshl_b32 s{sPair}, s{sPair}, 2")
    R(f"s_add_u32 s{sPair}, s{sPair}, s20")
    R(f"s_lshl_b32 s{sFl}, s21, 14")
    R(f"s_add_u32 s{sFl}, s{sFl}, {WS_FLAG}")
    R("s_lshr_b32 s60, s2, 4")
    R("s_lshl_b32 s60, s60, 9")
    R("s_lshl_b32 s61, s20, 7")
    R("s_add_u32 s60, s60, s61")
    R(f"s_add_u32 s66, s60, s{sFl}")
    R("s_lshl_b32 s60, s23, 9")
    R("s_add_u32 s60, s60, s61")
    R(f"s_add_u32 s60, s60, s{sFl}")
    R("s_add_u32 s60, s60, 8192")
    R("s_add_u32 s61, s60, 4096")
    R("s_cmp_eq_u32 s22, 0\ns_cselect_b32 s67, s61, s60\ns_cselect_b32 s51, s60, s61")
    R(f"v_lshlrev_b32 v0, 7, v1")
    R("v_mov_b32 v16, v21")
    R("v_writelane_b32 v16, s66, 0")
    R("v_writelane_b32 v16, s67, 1")
    R(f"s_lshl_b32 s60, s{sBlk}, 2")
    R("s_add_u32 s60, s60, s20")
    R("s_lshl_b32 s60, s60, 4")
    R("s_add_u32 s60, s60, s21")
    R("s_lshl_b32 s60, s60, 7")
    R(f"s_add_u32 s60, s60, {WS_FLAG2}")
    R("v_writelane_b32 v16, s60, 2")
    R("s_lshl_b32 s60, s20, 8")
    R("s_add_u32 s60, s60, s2")
    R("s_lshl_b32 s61, s60, 7")
    R(f"s_add_u32 s61, s61, {F_HN}")
    R("s_cmp_lt_u32 s60, 480\ns_cselect_b32 s61, s61, 0x7fff0000")
    R("v_writelane_b32 v16, s61, 3")
    R("v_mov_b32 v2, 0")
    for r in range(96, 256, 2): R(f"v_mov_b64 v[{r}:{r+1}], 0")
    for r in range(64): R(f"v_accvgpr_write_b32 a{r}, 0")
    weave(A, R.L, side[8:], 11)
    A("buffer_store_dword v2, v16, s[12:15], 0 offen sc1")
    A("s_waitcnt vmcnt(33)")
    XD = XR + 8; XS = XR + 24
    for row in range(2):
        for k in range(4):
            s_ = XR + 4*row + k; d = XD + 8*row + 2*k
            A(f"v_lshlrev_b32 v{d}, 16, v{s_}")
            A(f"v_and_b32 v{d+1}, 0xffff0000, v{s_}")
    for row in range(2):
        d = XD + 8*row
        A(f"v_add_f32 v{XS+row}, v{d}, v{d+1}")
        A(f"v_mul_f32 v{XS+2+row}, v{d}, v{d}")
        for k in range(1, 8):
            if k > 1: A(f"v_add_f32 v{XS+row}, v{XS+row}, v{d+k}")
            A(f"v_fmac_f32 v{XS+2+row}, v{d+k}, v{d+k}")
    A("s_nop 1")
    allsum16(A, [XS, XS+1, XS+2, XS+3])
    crossrow(A, "v_add_f32", [XS, XS+1, XS+2, XS+3], [XS+4, XS+5, XS+6, XS+7])
    A(f"s_mov_b32 s60, {f2u(1.0/448)}")
    for row in range(2):
        m_, v_ = XS+row, XS+2+row
        A(f"v_mul_f32 v{m_}, s60, v{m_}")
        A(f"v_mul_f32 v{v_}, s60, v{v_}")
        A(f"v_fma_f32 v{v_}, -v{m_}, v{m_}, v{v_}")
        A(f"v_max_f32 v{v_}, 0, v{v_}")
        A(f"v_add_f32 v{v_}, {hex(f2u(1e-5))}, v{v_}")
        A(f"v_rsq_f32 v{v_}, v{v_}")
        A("s_nop 0")
        A(f"v_mul_f32 v{v_}, {hex(f2u(QSCALE))}, v{v_}")
        d = XD + 8*row
        for k in range(8):
            A(f"v_sub_f32 v{d+k}, v{d+k}, v{m_}")
            A(f"v_mul_f32 v{d+k}, v{d+k}, v{v_}")
        for k in range(4):
            A(f"v_cvt_pk_bf16_f32 v{52+4*row+k}, v{d+2*k}, v{d+2*k+1}")
        A(f"ds_write_b128 v22, v[{52+4*row}:{55+4*row}] offset:{16*row}")
    for r in range(64, 96, 2): A(f"v_mov_b64 v[{r}:{r+1}], 0")
    A("s_bfe_u32 s64, s2, 0x20003")
    A("s_sub_u32 s64, 6, s64")
    A("s_cmp_eq_u32 s20, 0")
    A("s_cselect_b32 s64, s64, 99")
    A("s_lshl_b32 s65, s21, 2")
    A("s_bfe_u32 s100, s2, 0x10003")
    A("s_lshl_b32 s100, s100, 2")
    A("s_add_u32 s100, s100, s20")
    A("s_lshl_b32 s100, s100, 13")
    A("s_lshl_b32 s60, s20, 8")
    A("s_add_u32 s60, s60, s2")
    A("s_lshl_b32 s61, s60, 13")
    A("s_add_u32 s80, s68, s61")
    A("s_addc_u32 s81, s69, 0")
    A("s_mov_b32 s83, 0x20000")
    A("s_mul_i32 s33, s60, 11")
    A("s_lshr_b32 s33, s33, 10")
    A("s_sub_u32 s33, 6, s33")
    A("s_cmp_ge_u32 s60, 448")
    A("s_cmov_b32 s33, 99")
    C0, C1, WX, WY = 64, 96, 128, 160
    def rd_c(slot, creg, i, kh):
        base = rC + kh + (2 if slot >= 2 else 0)
        return f"ds_read_b128 {ar(creg + 4*(2*i+kh), 4)}, v{base} offset:{(slot & 1)*32768 + i*2048}"
    def rd_w(slot, wreg, j, kh, hh):
        base = rW + j + (4 if slot >= 2 else 0)
        return f"ds_read_b64_tr_b16 {ar(wreg + 4*(2*j+kh) + 2*hh, 2)}, v{base} offset:{(slot & 1)*32768 + kh*8192 + hh*1024}"
    A("s_waitcnt vmcnt(25) lgkmcnt(0)")
    A("s_barrier")
    A("ds_read_b128 v[52:55], v18")
    A("ds_read_b128 v[56:59], v18 offset:4096")
    for i in range(4):
        for kh in range(2): A(rd_c(0, C0, i, kh))
    for j in range(4):
        for kh in range(2):
            for hh in range(2): A(rd_w(0, WX, j, kh, hh))
    A("s_mov_b32 s26, 7")
    A("s_waitcnt lgkmcnt(15)")
    A("buffer_store_dwordx4 v[52:55], v19, s[12:15], s63 offen sc1")
    A("buffer_store_dwordx4 v[56:59], v20, s[12:15], s63 offen sc1")
    stamp(A, 0, 1)
    A("s_waitcnt vmcnt(19) lgkmcnt(0)")
    A("s_cmp_eq_u32 s22, 0")
    A("s_cbranch_scc0 KV_V")

    DMA = f"buffer_load_dwordx4 v{vOff}, s[4:7], s{sOff} offen lds"
    head_s = [f"s_mov_b32 s{sOff}, s{sA}", f"s_mov_b32 m0, s{sRW}", f"s_mov_b32 s{sA}, s{sB}", f"s_add_u32 s{sB}, s{sOff}, s{sInc}"]
    step_s = ["s_add_u32 m0, m0, 4096", f"s_add_u32 s{sOff}, s{sOff}, s{sDs}"]
    tail_s = [f"s_add_u32 s{sRW}, s{sRW}, 32768", f"s_and_b32 s{sRW}, s{sRW}, 0x1ffff"]
    stubs = []
    DG = [3, 7, 13, 17, 23, 27, 33, 37]
    def chk_s():
        o, b = A.label("AT_NS"), A.label("AT_NB")
        stubs.append((o, b))
        return [f"s_sub_u32 s{sCnt}, s{sCnt}, 1", f"s_cbranch_scc1 {o}\n{b}:"]
    def slot_list(check=True):
        out = []
        for i in range(8):
            t = DMA
            if i == 0: t = "\n".join(head_s) + "\n" + t
            if i < 7: t += "\n" + "\n".join(step_s)
            else: t += "\n" + "\n".join(tail_s + (chk_s() if check else []))
            out.append(t)
        return out
    def stream_items(base, fixed, sc, dma=True, mark=None, delta=False, nocheck=False, ring=True, dg=None):
        dg = dg or DG
        if dma:
            fixed.append((base + dg[0] - 3, It(head_s[0], "s")))
            fixed.append((base + dg[0] - 2, It(head_s[1], "s")))
            fixed.append((base + dg[0] - 2, It(head_s[2], "s")))
            fixed.append((base + dg[0] - 1, It(head_s[3], "s")))
            for i, g in enumerate(dg):
                t = DMA + (f"\n;@mark {mark}" if mark and i == 7 else "")
                fixed.append((base + g, It(t, "m")))
                if i < 7:
                    fixed.append((base + g + 1, It(step_s[0], "s")))
                    fixed.append((base + g + 2, It(step_s[1], "s")))
        if ring and delta:
            sc.append(It(f"s_add_u32 s60, s{sRR}, 32768", "s", base + 4))
            sc.append(It(f"s_and_b32 s60, s60, 0x1ffff", "s"))
            sc.append(It(f"s_sub_u32 s{sDel}, s60, s{sRR}", "s"))
            sc.append(It(f"s_mov_b32 s{sRR}, s60", "s", hi=base + 21))
        elif ring:
            sc.append(It(f"s_add_u32 s{sRR}, s{sRR}, 32768", "s", base + 4))
            sc.append(It(f"s_and_b32 s{sRR}, s{sRR}, 0x1ffff", "s", hi=base + 37))
        if dma:
            sc.append(It(tail_s[0], "s", base + 44))
            sc.append(It(tail_s[1], "s", hi=base + 62))
            if not nocheck:
                c_ = chk_s()
                sc.append(It(c_[0], "s"))
                sc.append(It(c_[1], "s", hi=base + 63))
    def xn_load(ks, qg): return "s_nop 0" if OPT["noxn"] is True else f"buffer_load_dwordx4 v{vL16}, s[12:15], s{sX0+qg} offen offset:{(ks % 4)*1024} sc1 lds" if OPT["noxn"] == "lds" and ks >= 4 else f"buffer_load_dwordx4 {ar(xn(ks, qg), 4)}, v{vL16}, s[12:15], s{sX0+qg} offen offset:{(ks % 4)*1024}" if OPT["noxn"] == "plain" else f"buffer_load_dwordx4 {ar(xn(ks, qg), 4)}, v{vL16}, s[12:15], s{sX0+qg} offen offset:{(ks % 4)*1024} sc1"
    def kv_store(src, u): return "s_nop 0" if OPT["nost"] else f"buffer_store_dwordx4 v[{src}:{src+3}], v{vSt}, s[12:15], s{sSt} offen offset:{u*1024} {OPT['st_kv']}"
    def poll(tag, load, check, nxt):
        A(f"s_mov_b32 s{sSpin}, 0x40000")
        A(f"{tag}_P:")
        for t in check: A(t)
        A(f"s_cbranch_scc1 {nxt}")
        A(f"s_sub_u32 s{sSpin}, s{sSpin}, 1")
        A(f"s_cbranch_scc1 {nxt}")
        A(f"s_sleep {OPT['slp']}")
        A(load)
        A("s_waitcnt vmcnt(0)")
        A(f"s_branch {tag}_P")
        A(f"{nxt}:")
    def publish(flag): return one(f"buffer_store_dword v2, off, s[12:15], s{flag} sc1")
    QBASE = {(0,1): 64, (1,1): 128, (1,0): 192}
    sigstubs = []
    def body(isV, last):
        mf = []; fixed = []; streams = []
        def tile(i, j): return 4*(4*j + i) if isV else 4*(4*i + j)
        def acc(a, b, i, j):
            return ar(tile(i, j), 4) if (a, b) == (0, 0) else vr(QBASE[(a, b)] + tile(i, j), 4)
        def quad(a, b, creg, wreg, tagw):
            for i in range(4):
                js = range(4) if i % 2 == 0 else range(3, -1, -1)
                for n_, j in enumerate(js):
                    for kh in ((0, 1) if n_ % 2 == 0 else (1, 0)):
                        c = ar(creg + 4*(2*i+kh), 4); w = ar(wreg + 4*(2*j+kh), 4)
                        x, y = (c, w) if isV else (w, c)
                        d = acc(a, b, i, j)
                        need = [(tagw, j, kh, 0), (tagw, j, kh, 1)] if tagw else []
                        mf.append((f"{MF} {d}, {x}, {y}, {d}", need))
        dgaps = [3 + 5*k for k in range(8)] if not last else [4 + 5*k for k in range(8)]
        xg = [44, 49, 54, 59]
        def place(base, start, texts):
            g = start
            for rid, t, step in texts:
                while g in dgaps or g in xg: g += 1
                fixed.append((base + g, It(t, "d", rid=rid)))
                g += step
        sc = []
        for e in range(2):
            W0, W1 = (WX, WY) if e == 0 else (WY, WX)
            for half in range(2):
                n = 2*e + half
                base = 64*n
                slot = (n + 1) % 4
                tc, tw = f"c{n}", f"w{n}"
                final = last and n == 3
                if half == 0:
                    quad(0, 0, C0, W0, None); quad(0, 1, C0, W1, tw)
                    rw = (1, W1); rc = (30, C1)
                else:
                    quad(1, 1, C1, W1, None); quad(1, 0, C1, W0, None)
                    rc = (1, C0); rw = (32, W1)
                fixed.append((base, It("s_barrier", "b")))
                if not final:
                    place(base, rw[0], [((tw, j, kh, hh), rd_w(slot, rw[1], j, kh, hh), 1) for j in range(4) for kh in range(2) for hh in range(2)])
                    place(base, rc[0], [((tc, i, kh), rd_c(slot, rc[1], i, kh), 2) for i in range(4) for kh in range(2)])
                if not last:
                    fixed.append((base + dgaps[0] - 1, It(f"s_add_u32 m0, s27, {n*32768}", "s")))
                    fixed.append((base + dgaps[4] - 1, It(f"s_add_u32 m0, s27, {n*32768+16384}", "s")))
                    for i in range(4):
                        fixed.append((base + dgaps[i], It(dma_c(i), "m")))
                        fixed.append((base + dgaps[4+i], It(dma_w(i), "m")))
                    fixed.append((base + dgaps[3] + 1, It(adv_c(n & 1), "s")))
                    fixed.append((base + dgaps[7] + 1, It(adv_w(n & 1), "s")))
                    if n == 0:
                        fixed.append((base + 41, It("s_cmp_eq_u32 s26, 1", "s")))
                        fixed.append((base + 42, It("s_cselect_b32 s60, 0, 0x1000", "s")))
                        fixed.append((base + 44, It(f"buffer_load_dword v{vFlag}, v{vL4}, s[72:75], s60 offen sc1", "m")))
                    if n == 2 and OPT["pfq"]:
                        fixed.append((base + 41, It("s_cmp_eq_u32 s26, s33", "s")))
                        fixed.append((base + 42, It("s_cselect_b32 s82, 8192, 0", "s")))
                        fixed.append((base + 44, It("buffer_load_dword v27, v0, s[80:83], 0 offen", "m")))
                    if n == 1 and OPT["rtc"]:
                        fixed.append((base + 41, It("s_cmp_eq_u32 s26, 1", "s")))
                        fixed.append((base + 42, It("s_cselect_b32 s60, s100, 0x100000", "s")))
                        fixed.append((base + 44, It("buffer_load_dword v27, v0, s[96:99], s60 offen", "m")))
                    vm = [18, 18, 19, 18][n] if OPT["rtc"] else [18, 17, 18, 17][n]
                    fixed.append((base + 63, It(f"s_waitcnt vmcnt({vm}) lgkmcnt(0)", "s")))
                else:
                    stream_items(base, fixed, sc, mark=f"wq{n}_{isV}", nocheck=True, ring=False, dg=dgaps)
                    if n < 2:
                        for k, g in enumerate(xg):
                            fixed.append((base + g, It(xn_load(2*n + k//2, k % 2), "m")))
                    if n == 0: w = f"s_waitcnt vmcnt(@kv_last{isV}+8) lgkmcnt(0)"
                    elif n == 1: w = f"s_waitcnt vmcnt(@kv_last{isV}+0) lgkmcnt(0)"
                    elif n == 2: w = "s_waitcnt lgkmcnt(0)"
                    else: w = None
                    if w: fixed.append((base + 63, It(w, "s")))
        if not last:
            o, b = A.label("KV_SS"), A.label("KV_SB")
            sigstubs.append((o, b))
            fixed.append((246, It("s_sub_u32 s26, s26, 1", "s")))
            fixed.append((247, It("s_cmp_eq_u32 s26, s64", "s")))
            fixed.append((248, It(f"s_cbranch_scc1 {o}\n{b}:", "s")))
            fixed.append((251, It("s_cmp_lg_u32 s26, 0", "s")))
            sched(A, mf, fixed, streams, name=f"kv{isV}")
            return
        st = [It(f"s_mov_b32 s{sSt}, 0", "s", 128+32)]
        TQ = [32, 36, 60]
        for p_ in range(8):
            lo = 128 + 32 + 8 + int(OPT["st0"])*p_
            t = TQ[p_ % 3]
            for k in range(2):
                x = 52 + 4*k
                for r in range(4): st.append(It(f"v_accvgpr_read_b32 v{x+r}, a{8*p_ + 4*k + r}", "v", 128+32+8))
                st.append(It(f"v_cvt_pk_bf16_f32 v{t+2*k}, v{x}, v{x+1}", "v"))
                st.append(It(f"v_cvt_pk_bf16_f32 v{t+2*k+1}, v{x+2}, v{x+3}", "v"))
            st.append(It(kv_store(t, p_ % 2), "m", lo, gapafter=1))
            if p_ % 2 == 1: st.append(It(f"s_add_u32 s{sSt}, s{sSt}, s{sSO}", "s"))
        pk = []
        for src, dst, lo in ((64, 64, 128+64+8), (128, 96, 128+96+8)):
            for r in range(32): pk.append(It(f"v_cvt_pk_bf16_f32 v{dst+r}, v{src+2*r}, v{src+2*r+1}", "v", lo))
        sched(A, mf, fixed, [sc, st, pk], name=f"kvlast{isV}")

    for isV in (0, 1):
        if isV: A("KV_V:")
        A(".p2align 6")
        A(f"KV_LOOP{isV}:")
        body(isV, False)
        A(f"s_cbranch_scc1 KV_LOOP{isV}")
        stamp(A, 0, 2)
        poll(f"KV_X{isV}", f"buffer_load_dword v{vFlag}, v{vL4}, s[72:75], 0 offen sc1",
             [f"v_cmp_eq_u32 vcc, 16, v{vFlag}", "s_nop 1", "s_cmp_eq_u32 vcc_lo, 0xffff"], f"KV_Y{isV}")
        srd(A, 4, 68, 448*4096*2)
        A(f"v_mov_b32 v{vOff}, v{vWq}")
        A(f"s_mov_b32 s{sA}, 0")
        A(f"s_mov_b32 s{sB}, {64*8192}")
        A(f"s_mov_b32 s{sInc}, {128*8192}")
        A(f"s_mov_b32 s{sDs}, {8*8192}")
        A(f"s_lshl_b32 s{sRW}, s20, 10")
        A(f"s_mov_b32 s{sRR}, {3*32768}")
        A(f"s_lshl_b32 s{sX0}, s{sBlk}, 3")
        A(f"s_add_u32 s{sX0}, s{sX0}, s20")
        A(f"s_mul_i32 s{sX0}, s{sX0}, 14336")
        A(f"s_add_u32 s{sX0}, s{sX0}, {WS_XN}")
        A(f"s_add_u32 s{sX1}, s{sX0}, {4*14336}")
        body(isV, True)
        A(f"s_waitcnt vmcnt(@wq2_{isV}+0)")
        if not isV: A("s_branch KV_J")
    A("KV_J:")
    stamp(A, 0, 3)
    A("s_barrier")
    def ring(f): return ar(RING + 4*(f % 16), 4)
    def rdq(rho, ph=0):
        f, hh = rho // 2, rho % 2
        dt, kh = f // 2, f % 2
        return f"ds_read_b64_tr_b16 {ar(RING + 4*(f % 16) + 2*hh, 2)}, v{ADQ[dt & 7]} offset:{(ph & 1)*32768 + kh*16384 + hh*8192 + (dt >> 3)*256}"
    for rho in range(12): A(rdq(rho))
    weave(A, [f"v_cvt_pk_bf16_f32 v{32+r}, v{192+2*r}, v{193+2*r}" for r in range(32)], [rdq(rho) for rho in range(12, 24)], 2)
    def spread(n, gaps):
        extra = n - len(gaps); out = []; acc = 0.0
        if extra < 0:
            return [gaps[(i*len(gaps))//n] for i in range(n)]
        for g in gaps:
            out.append(g); acc += extra / len(gaps)
            if acc >= 0.999: out.append(g); acc -= 1.0
        assert len(out) == n, (len(out), n)
        return out
    mf = []; fixed = []; sc = []; va = []
    STP = int(OPT["stp"])
    stq = []
    for (a_, b_), src in (((0,1), 64), ((1,1), 96), ((1,0), 32)):
        for p_ in range(8): stq.append((a_, b_, p_, src + 4*p_))
    used = set()
    for ph in range(7):
        if ph in (1, 2, 3, 6):
            for g in DG: used |= {64*ph + g, 64*ph + g + 1, 64*ph + g + 2}
            used |= {64*ph, 64*ph + 1, 64*ph + 2}
        used |= {64*ph + 40, 64*ph + 41}
    g0 = int(OPT["chk"])
    used |= {g0, g0 + 2, g0 + 3, 4*64 + 62}
    mgaps = {g0}
    def take(g):
        while g in used: g += 1
        used.add(g); mgaps.add(g)
        return g
    xl = [(ks, qg) for ks in range(4, 14) for qg in range(2)]
    xpos = [3 + 5*k for k in range(12)] + [64 + 44 + 5*k for k in range(4)] + [128 + 44 + 5*k for k in range(4)]
    fixed.append((0, It(f"s_add_u32 s{sX0}, s{sX0}, 4096", "s"))); fixed.append((1, It(f"s_add_u32 s{sX1}, s{sX1}, 4096", "s")))
    used |= {0, 1}
    for (ks, qg), g in zip(xl, xpos):
        g = take(g)
        t = xn_load(ks, qg) + (f"\n;@mark xn{ks//2}" if (ks % 2, qg) == (1, 1) else "")
        fixed.append((g, It(t, "m")))
        if ks % 4 == 3:
            fixed.append((g + 1, It(f"s_add_u32 s{sX0+qg}, s{sX0+qg}, 4096", "s"))); used.add(g + 1)
    for k, (a_, b_, p_, src) in enumerate(stq):
        g = 6 + STP*k
        while g in used or g - 1 in used: g += 1
        if p_ == 0:
            t = f"s_mov_b32 s{sSt}, {a_*16*KTS}" if b_ == 0 else f"s_add_u32 s{sSt}, s{sSB}, {a_*16*KTS}"
            fixed.append((g - 1, It(t, "s")))
        elif p_ % 2 == 0:
            fixed.append((g - 1, It(f"s_add_u32 s{sSt}, s{sSt}, s{sSO}", "s")))
        used.add(g - 1); take(g)
        fixed.append((g, It(kv_store(src, p_ % 2) + ("\n;@mark kvst" if k == 7 else ""), "m")))
        last_store = g
    assert last_store < 447
    SIG = int(OPT["sig"])
    while {SIG, SIG - 1} & used: SIG += 1
    fixed.append((SIG - 1, It("s_waitcnt vmcnt(@kvst+0)", "s")))
    used |= {SIG - 1}; take(SIG)
    fixed.append((SIG, It(publish(66), "m")))
    kvload = f"buffer_load_dword v{vKV}, v0, s[12:15], s{sFl} offen sc1"
    fixed.append((take(g0 - 28), It(kvload + "\n;@mark kvl", "m")))
    fixed.append((g0, It("s_waitcnt vmcnt(@kvl+0)", "s")))
    fixed.append((g0, It(f"v_cmp_le_u32 vcc, 1, v{vKV}", "v")))
    fixed.append((g0 + 2, It("s_cmp_eq_u64 vcc, -1", "s")))
    fixed.append((g0 + 3, It("s_cbranch_scc0 AT_KVS\nAT_KVB:", "s")))
    fixed.append((4*64 + 62, It("s_call_b64 s[34:35], AT_NEXT", "s")))
    A(f"s_mov_b32 s{sSplit}, 0")
    A(f"s_mov_b32 s{sKVp}, {WS_SIZE}")
    A(f"s_cmp_eq_u32 s{sMode}, 3")
    A(f"s_cselect_b32 s{sSec}, 0, 4")
    A(f"s_mov_b32 s{sST0}, s{sT0}")
    A(f"s_mov_b32 s{sSN}, s{sN}")
    def rd128(f): return f"ds_read_b128 {ring(f)}, v{vRd} offset:{f*1024}"
    TAILG = list(range(42, 64, 2)) + [63]
    A(f"v_add_u32 v{vRd}, s{sRR}, v{vL16}")
    A("v_mov_b32 v2, 1")
    for ph in range(7):
        base = 64*ph
        for dt in range(16):
            for qg, kh in ((0,0),(0,1),(1,1),(1,0)):
                d = vr(O + 4*(2*dt+qg), 4)
                first = ph == 0 and (qg, kh) in ((0,0),(1,1))
                f = 2*dt + kh
                mf.append((f"{MF} {d}, {ring(f)}, {ar(xn(2*ph+kh, qg), 4)}, {'0' if first else d}", [(ph, 2*f), (ph, 2*f+1)]))
        dma = ph in (1, 2, 3, 6)
        stream_items(base, fixed, sc, dma=dma, mark=f"wq{ph+3}", ring=False, nocheck=ph < 5)
        blocked = {g - base for g in mgaps} | (set(DG) | {1} if dma else set())
        own = spread(40, [g for g in range(0, 40) if g not in blocked])
        assert all(g >= 4*(((24+i)//2 - 16)//2) + 3 for i, g in enumerate(own) if i >= 8)
        for i, g in enumerate(own): fixed.append((base + g, It(rdq(24+i, ph), "d", rid=(ph, 24+i))))
        if ph < 6:
            w = {0: None, 1: "@xn2+0", 2: "@xn3+0", 3: "@wq4+0", 4: "@wq5+0", 5: "@wq6+0"}[ph]
            if w and not OPT["novw"]: fixed.append((base + 40, It(f"s_waitcnt vmcnt({w})", "s")))
            fixed.append((base + 41, It("s_barrier", "b")))
            tl = spread(24, [g for g in range(42, 64) if g not in blocked])
            assert all(g >= 4*((16 + i//2)//2) + 3 for i, g in enumerate(tl))
            for i, g in enumerate(tl): fixed.append((base + g, It(rdq(i, ph+1), "d", rid=(ph+1, i))))
            for k in range(8 if ph % 2 else 0):
                va.append(It(f"v_xor_b32 v{ADQ[k]}, 0x10000, v{ADQ[k]}", "v", base + own[4*(8+k)+3-24], hi=base + (tl[4*k] - 1 if k < 6 else 63)))
        else:
            n_ = 0
            for T in range(8):
                for qg in range(2):
                    t = TMP + 4*(n_ % 2); n_ += 1
                    lo = base + 8*T + 7 + 8
                    for k in range(2):
                        x = O + 4*(2*(2*T+k)+qg)
                        va.append(It(f"v_cvt_pk_bf16_f32 v{t+2*k}, v{x}, v{x+1}", "v", lo))
                        va.append(It(f"v_cvt_pk_bf16_f32 v{t+2*k+1}, v{x+2}, v{x+3}", "v", lo))
                    for k in range(4): va.append(It(f"v_accvgpr_write_b32 a{Q + 4*(8*qg+T) + k}, v{t+k}", "v", lo))
    QS = [8, 10, 76, 78, 96, 98, 100]
    if OPT["qst"]:
        qs = []
        for k in range(14):
            qs.append(It("s_memtime s[90:91]", "s", 32*k + 12, gapafter=12))
            qs.append(It(f"v_writelane_b32 v26, s90, {k+1}", "v"))
        A("v_writelane_b32 v26, s92, 0")
        va[:0] = []
        sc2 = [qs]
    else: sc2 = []
    sched(A, mf, fixed, [sc] + sc2 + [va], carry=[((0, i), -30) for i in range(24)], name="qproj", overnop=7, overside=slot_list() + slot_list(), overevery=5)
    if OPT["qst"]:
        A("s_waitcnt lgkmcnt(0)")
        A("s_lshl_b32 s94, s2, 2\ns_add_u32 s94, s94, s20\ns_lshl_b32 s94, s94, 7")
        A(f"s_add_u32 s94, s94, {WS_STAMP + 0x40000}")
        A("v_lshlrev_b32 v3, 2, v1")
        A("s_mov_b64 exec, 0xffff")
        A("buffer_store_dword v26, v3, s[12:15], s94 offen")
        A("s_mov_b64 exec, -1")
    stamp(A, 0, 4)
    if OPT["pfw"]:
        l = A.label("PC")
        A("s_lshl_b32 s60, s20, 8")
        A("s_add_u32 s60, s60, s2")
        A("s_lshl_b32 s61, s60, 13")
        for d, b_ in ((76, 70), (84, 84), (86, 86)):
            A(f"s_add_u32 s{d}, s{b_}, s61")
            A(f"s_addc_u32 s{d+1}, s{b_+1}, 0")
        A("s_getpc_b64 s[62:63]")
        A(f"{l}:")
        A(f"s_sub_u32 s61, s61, {448*8192}-(TL_BEGIN-{l})")
        A("s_add_u32 s62, s62, s61")
        A("s_addc_u32 s63, s63, 0")
        A("s_mul_i32 s9, s60, 6")
        A("s_lshr_b32 s9, s9, 10")
        A("s_add_u32 s10, s9, 3")
        A("s_add_u32 s11, s9, 8")
        A("s_cmp_ge_u32 s60, 448")
        A("s_cmov_b64 s[76:77], s[62:63]")
        A("s_cmp_ge_u32 s60, 896")
        A("s_cmov_b32 s10, 99")
        A("s_cmov_b32 s11, 99")
        A("s_cmp_ge_u32 s60, 448+(ALL_END-TL_BEGIN)/8192")
        A("s_cmov_b64 s[76:77], s[84:85]")
        A("s_cmov_b64 s[84:85], s[86:87]")
        A("s_cmov_b32 s9, s10")
        A("s_cmov_b32 s10, s11")
        A("s_mov_b32 s8, 0")
    def q_addr():
        A(f"s_lshl_b32 s60, s{sPair}, 14")
        A(f"s_add_u32 s60, s60, {WS_Q}")
    A("s_waitcnt vmcnt(@wq9+0)")
    stamp(A, 0, 5)
    CARRY128 = lambda tag: [((tag, f), TAILG[f] - 64) for f in range(12)]
    def own128(base, fixed, tag):
        for f in range(12, 32): fixed.append((base + 2*(f-12), It(rd128(f), "d", rid=(tag, f))))
    VMW = 18
    def tail128(base, fixed, tag, vm=VMW):
        fixed.append((base + 38, It(f"v_add_u32 v{vRd}, s{sRR}, v{vL16}", "v")))
        fixed.append((base + 40, It(f"s_waitcnt vmcnt({vm})", "s")))
        fixed.append((base + 41, It("s_barrier", "b")))
        for f in range(12): fixed.append((base + TAILG[f], It(rd128(f), "d", rid=(tag, f))))
    def mf_qk(tag, cin):
        mf = []
        for kt in range(4):
            for qg in range(2):
                for T in range(8):
                    d = vr(S + 4*(2*kt+qg), 4)
                    c = vr(cin + 4*(2*kt+qg), 4) if T == 0 else d
                    mf.append((f"{MF} {d}, {ring(8*kt+T)}, {ar(Q + 4*(8*qg+T), 4)}, {c}", [(tag, 8*kt+T)]))
        return mf
    def mf_pv(tag, p):
        mf = []
        for dt in range(16):
            for qg, T in ((0,0),(0,1),(1,1),(1,0)):
                d = vr(O + 4*(2*dt+qg), 4)
                mf.append((f"{MF} {d}, {ring(2*dt+T)}, {vr(p + 4*(2*qg+T), 4)}, {d}", [(tag, 2*dt+T)]))
        return mf
    TSETS = [[16, 17, 18, 19], [20, 21, 22, 23], [28, 29, 30, 5]]
    def softmax_groups(p, lo_of):
        exs, posts, last_use = [], [], {}
        gi = 0
        for kt in range(4):
            for qg in range(2):
                t = TSETS[gi % 3]; s0 = S + 4*(2*kt+qg); d = p + 4*(2*qg + kt//2) + 2*(kt % 2)
                ex = []
                for j in range(4):
                    deps = [(last_use[t[j]], 0)] if t[j] in last_use else []
                    ex.append(It(f"v_exp_f32 v{t[j]}, v{s0+j}", "x", lo_of(kt, qg), deps=deps))
                def post(txt, *js):
                    it = It(txt, "v", deps=[(ex[j], 1) for j in js])
                    for j in js: last_use[t[j]] = it
                    posts.append(it)
                if kt == 0: post(f"v_add_f32 v{TS+qg}, v{t[0]}, v{t[1]}", 0, 1)
                else:
                    post(f"v_add_f32 v{TS+qg}, v{TS+qg}, v{t[0]}", 0)
                    post(f"v_add_f32 v{TS+qg}, v{TS+qg}, v{t[1]}", 1)
                post(f"v_cvt_pk_bf16_f32 v{d}, v{t[0]}, v{t[1]}", 0, 1)
                post(f"v_add_f32 v{TS+qg}, v{TS+qg}, v{t[2]}", 2)
                post(f"v_add_f32 v{TS+qg}, v{TS+qg}, v{t[3]}", 3)
                post(f"v_cvt_pk_bf16_f32 v{d+1}, v{t[2]}, v{t[3]}", 2, 3)
                exs += ex
                gi += 1
        return exs, posts
    def softmax_plain(p, A):
        exs, posts = softmax_groups(p, lambda kt, qg: 0)
        pi = 0
        for gi in range(9):
            for it in exs[4*gi:4*gi+4]: A(it.text)
            if gi == 8: A("s_nop 0")
            if gi >= 1:
                k = 5 if gi <= 2 else 6
                for it in posts[pi:pi+k]: A(it.text)
                pi += k
    TOUCH = "buffer_load_dword v27, v0, s[80:83], 0 offen"
    A("AT_SEG:")
    A(f"v_add_u32 v{vRd}, s{sRR}, v{vL16}")
    A("s_barrier")
    for f in range(12): A(rd128(f))
    A("AT_SEG2:")
    for qg in range(2):
        A(f"v_mov_b32 v{NEGM+qg}, 0")
        A(f"v_mov_b32 v{LS+qg}, 0")
    A(f"s_mov_b32 s{sTile}, s{sT0}")
    A(f"s_sub_u32 s{sRem}, s{sN}, 1")
    A(f"s_cmp_eq_u32 s{sMode}, 1")
    A(f"s_cselect_b32 s{sThr}, 0, 2")
    A("s_call_b64 s[36:37], AT_SETC")
    stamp(A, 0, 6)
    fixed = []; sc = []
    stream_items(0, fixed, sc)
    own128(0, fixed, "k0"); tail128(0, fixed, "n", vm=16)
    kvload2 = f"buffer_load_dword v{vKV}, v0, s[12:15], s{sKVp} offen sc1"
    fixed.append((43, It("v_mov_b32 v2, 2", "v")))
    fixed.append((43, It("s_nop 0", "s")))
    fixed.append((49, It(publish(66), "m")))
    fixed.append((59, It(kvload2, "m")))
    fixed.append((61, It(f"buffer_load_dword v{vFlag}, off, s[12:15], s51 sc1", "m")))
    va = [It(f"v_mov_b64 v[{r}:{r+1}], 0", "v") for r in range(O, O+128, 2)]
    sched(A, mf_qk("k0", C), fixed, [sc, va], carry=CARRY128("k0"), name="qk0")
    def fixup(p, init, A=A):
        A("s_nop 7")
        for qg in range(2):
            r = [S + 4*(2*kt+qg) + j for kt in range(4) for j in range(4)]
            A(f"v_max3_f32 v{2+qg}, v{r[0]}, v{r[1]}, v{r[2]}")
            for k in range(3, 15, 2): A(f"v_max3_f32 v{2+qg}, v{2+qg}, v{r[k]}, v{r[k+1]}")
            A(f"v_max_f32 v{2+qg}, v{2+qg}, v{r[15]}")
        crossrow(A, "v_max_f32", [2, 3], [16, 17])
        for qg in range(2):
            if not init: A(f"v_max_f32 v{2+qg}, 0, v{2+qg}")
            A(f"v_sub_f32 v{NEGM+qg}, v{NEGM+qg}, v{2+qg}")
            for kt in range(4):
                for j in range(4):
                    x = 4*(2*kt+qg) + j
                    A(f"v_sub_f32 v{S+x}, v{S+x}, v{2+qg}")
                    A(f"v_mov_b32 v{C+x}, v{NEGM+qg}")
        if not init:
            for qg in range(2): A(f"v_exp_f32 v{2+qg}, -v{2+qg}")
            A("s_nop 0")
            for qg in range(2):
                A(f"v_mul_f32 v{LS+qg}, v{LS+qg}, v{2+qg}")
                for dt in range(16):
                    x = O + 4*(2*dt+qg)
                    for h_ in range(2):
                        A(f"v_pk_mul_f32 v[{x+2*h_}:{x+2*h_+1}], v[{x+2*h_}:{x+2*h_+1}], v[2:3] op_sel:[0,{qg}] op_sel_hi:[1,{qg}]")
        softmax_plain(p, A)
    A(f"s_cmp_eq_u32 s{sMode}, 2")
    A("s_cbranch_scc1 AT_INITQ")
    fixup(P[0], True)
    A("s_branch AT_H1B")
    A("AT_INITQ:")
    q_addr()
    R = Rec(); fixup(P[0], True, R)
    weave(A, R.L, [f"buffer_store_dwordx4 {ar(Q + 4*f, 4)}, v{vL16}, s[12:15], s60 offen offset:{(f % 4)*1024} sc1" + ("\ns_add_u32 s60, s60, 4096" if f % 4 == 3 else "") for f in range(16)], 9)
    A(f"s_mov_b32 s{sThr}, 99")
    stamp(A, 0, 7)
    A(".p2align 6")
    for par in range(2):
        A(f"AT_BODY{par}:")
        fixed = []; sc = []
        stream_items(0, fixed, sc); own128(0, fixed, "n"); tail128(0, fixed, "v")
        stream_items(64, fixed, sc); own128(64, fixed, "v"); tail128(64, fixed, "n2")
        if OPT["pfw"]:
            sc.append(It("s_cmp_eq_u32 s8, s9", "s", 112))
            sc.append(It("s_cselect_b32 s82, 8192, 0", "s"))
            sc.append(It("s_cmov_b32 s9, s10", "s"))
            sc.append(It("s_cmov_b32 s10, s11", "s"))
            sc.append(It("s_mov_b64 s[80:81], s[76:77]", "s"))
            sc.append(It("s_cmov_b64 s[76:77], s[84:85]", "s"))
            sc.append(It("s_cmov_b64 s[84:85], s[86:87]", "s"))
            sc.append(It("s_add_u32 s8, s8, 1", "s", hi=122))
            fixed.append((123, It(kvload2, "m")))
            fixed.append((125, It(TOUCH, "m")))
        sc.append(It(f"s_sub_u32 s{sRem}, s{sRem}, 1", "s", 120))
        sc.append(It(f"s_cmp_le_u32 s{sRem}, s{sThr}", "s", hi=127))
        va = [It(f"v_add_f32 v{LS+qg}, v{LS+qg}, v{TS+qg}", "v", 2) for qg in range(2)]
        exs, posts = softmax_groups(P[1-par], lambda kt, qg: 16*kt + 8*qg + 15)
        va += posts
        va.append(It(f"v_max_f32 v26, v{TS}, v{TS+1}", "v"))
        va.append(It(f"v_cmp_nge_f32 vcc, {hex(f2u(PTHR))}, v26", "v"))
        sched(A, mf_qk("n", C) + mf_pv("v", P[par]), fixed, [sc, exs, va], carry=CARRY128("n"), name=f"body{par}", lat=int(OPT["lat"]))
        A(f"s_cbranch_vccnz AT_H{par}")
        if par == 0:
            A(f"s_cbranch_scc1 AT_H0B")
        else:
            A(f"s_cbranch_scc0 AT_BODY0")
            A(f"s_branch AT_H1B")
    for par in range(2):
        A(f"AT_H{par}:")
        fixup(P[1-par], False)
        A(f"AT_H{par}B:")
        if par == 0:
            A(f"s_cmp_eq_u32 s{sThr}, 99")
            A("s_cbranch_scc0 AT_H0C")
            A("v_mov_b32 v2, 1")
            A(f"s_mov_b32 s{sThr}, 2")
            A("s_waitcnt vmcnt(18)")
            A(publish(67))
            A("AT_H0C:")
        A(f"s_cmp_eq_u32 s{sRem}, 0")
        A(f"s_cbranch_scc1 AT_LAST{1-par}")
        A(f"s_cmp_le_u32 s{sRem}, s{sThr}")
        A(f"s_cbranch_scc0 AT_BODY{1-par}")
        A(f"s_add_u32 s{sTile}, s{sT0}, s{sN}")
        A(f"s_sub_u32 s{sTile}, s{sTile}, s{sRem}")
        A("s_call_b64 s[36:37], AT_SETC")
        A(f"s_branch AT_BODY{1-par}")
    A("AT_SETC:")
    A(f"s_lshl_b32 s60, s{sBlk}, 7")
    A(f"s_lshl_b32 s61, s{sTile}, 6")
    A("s_sub_u32 s60, s60, s61")
    A(f"v_add_u32 v2, s60, v{vThr}")
    A("v_cvt_f32_i32 v2, v2")
    A("v_add_f32 v2, 0.5, v2")
    A(f"v_mul_f32 v2, {hex(f2u(BIG))}, v2")
    for kt in range(4):
        for qg in range(2):
            for j in range(4):
                x = C + 4*(2*kt+qg) + j
                A(f"v_add_f32 v{x}, {hex(f2u(-(16*kt + j - 64*qg)*BIG))}, v2")
                A(f"v_min_f32 v{x}, v{x}, v{NEGM+qg}")
    if OPT["rtc"]: A("buffer_load_dword v27, v0, s[96:99], s100 offen")
    A(f"buffer_load_dword v{vFlag}, off, s[12:15], s51 sc1")
    A("s_setpc_b64 s[36:37]")
    A("AT_KVS:")
    poll("AT_KV", kvload, [f"v_cmp_le_u32 vcc, 1, v{vKV}", "s_nop 1", "s_cmp_eq_u64 vcc, -1"], "AT_KVOK")
    A("s_branch AT_KVB")
    A("AT_N_C:")
    A("s_waitcnt vmcnt(9)")
    poll("AT_K2", kvload, [f"v_cmp_le_u32 vcc, 2, v{vKV}", "s_nop 1", "s_cmp_eq_u64 vcc, -1"], "AT_K2OK")
    A(f"s_sub_u32 s{sCnt}, s{sSplit}, 1")
    A(f"s_mov_b32 s{sSplit}, 0")
    A(f"s_mov_b32 s{sKVp}, {WS_SIZE}")
    A("s_setpc_b64 s[34:35]")
    A("AT_N_A:")
    A(f"s_lshl_b32 s62, s{sST0}, 1")
    A("s_sub_u32 s62, 29, s62")
    A(f"s_sub_u32 s{sSplit}, s{sCnt}, s62")
    A(f"s_mov_b32 s{sCnt}, s62")
    A(f"s_mov_b32 s{sKVp}, s{sFl}")
    A("s_setpc_b64 s[34:35]")
    A("AT_NEXT:")
    A(f"s_cmp_lg_u32 s{sSplit}, 0")
    A("s_cbranch_scc1 AT_N_C")
    A(f"s_add_u32 s{sSec}, s{sSec}, 1")
    A(f"s_cmp_eq_u32 s{sSec}, 8")
    A("s_cbranch_scc1 AT_N_WO")
    A(f"s_and_b32 s62, s{sSec}, 3")
    A("s_cmp_eq_u32 s62, 0")
    A("s_cbranch_scc1 AT_N_H")
    A("s_cmp_eq_u32 s62, 1")
    A("s_cbranch_scc1 AT_N_K0")
    A("s_cmp_eq_u32 s62, 3")
    A("s_cbranch_scc1 AT_N_VL")
    A(f"s_mov_b32 s{sInc}, {KTS}")
    A(f"s_lshl_b32 s{sCnt}, s{sSN}, 1")
    A(f"s_sub_u32 s{sCnt}, s{sCnt}, 3")
    A("s_cbranch_scc0 AT_N_R2")
    A(f"s_add_u32 s{sSec}, s{sSec}, 1")
    A("AT_N_VL:")
    A(f"s_mov_b32 s{sA}, s{sB}")
    A(f"s_mov_b32 s{sCnt}, 0")
    A("AT_N_RET:")
    A("s_setpc_b64 s[34:35]")
    A("AT_N_R2:")
    A("s_cmp_eq_u32 s22, 1")
    A("s_cbranch_scc1 AT_N_A")
    A("s_setpc_b64 s[34:35]")
    A("AT_N_H:")
    A(f"s_mov_b32 s{sSec}, 5")
    A(f"s_mov_b32 s{sST0}, 0")
    A(f"s_mov_b32 s{sSN}, s{sNH}")
    A("AT_N_K0:")
    srd(A, 4, 18, WS_SIZE)
    A(f"v_mov_b32 v{vOff}, v{vLin}")
    A(f"s_mul_i32 s{sA}, s{sST0}, {KTS}")
    A(f"s_add_u32 s{sA}, s{sA}, s{sKV}")
    A(f"s_add_u32 s{sB}, s{sA}, {KTS}")
    A(f"s_mov_b32 s{sInc}, 32768")
    A(f"s_mov_b32 s{sDs}, 4096")
    A(f"s_mov_b32 s{sCnt}, 0")
    A("s_setpc_b64 s[34:35]")
    A("AT_N_WO:")
    srd(A, 4, 70, 4096*448*2)
    A(f"v_mov_b32 v{vOff}, v{vWo}")
    A(f"s_mov_b32 s{sA}, 0")
    A(f"s_mov_b32 s{sB}, 128")
    A(f"s_mov_b32 s{sInc}, 256")
    A(f"s_mov_b32 s{sDs}, {32*896}")
    A(f"s_mov_b32 s{sCnt}, 100")
    A("s_setpc_b64 s[34:35]")
    def po_addr():
        A(f"s_lshl_b32 s63, s{sPair}, 9")
        A(f"s_add_u32 s63, s63, {WS_LSE}")
        A(f"s_lshl_b32 s60, s{sPair}, 14")
        A(f"s_add_u32 s60, s60, {WS_PO}")
        A("v_lshlrev_b32 v2, 3, v1")
    A("AT_LAST1:")
    for r in range(0, 16, 2): A(f"v_mov_b64 v[{P[0]+r}:{P[0]+r+1}], v[{P[1]+r}:{P[1]+r+1}]")
    A("AT_LAST0:")
    stamp(A, 0, 8)
    A(f"s_cmp_lt_u32 s{sMode}, 2")
    A("s_cbranch_scc1 AT_LP")
    poll("AT_PF", f"buffer_load_dword v{vFlag}, off, s[12:15], s51 sc1",
         [f"v_readfirstlane_b32 s60, v{vFlag}", "s_cmp_eq_u32 s60, 1"], "AT_PFOK")
    A(f"s_cmp_eq_u32 s{sMode}, 2")
    A("s_cbranch_scc1 AT_LA")
    def lastpv(dst, tag):
        fixed = []; sc = []
        stream_items(0, fixed, sc, dma=False); own128(0, fixed, "n")
        if dst:
            for f in range(16):
                fixed.append((1 + 4*f, It(f"buffer_load_dwordx4 {dst(f)}, v{vL16}, s[12:15], s60 offen offset:{(f % 4)*1024} sc1", "m")))
                if f % 4 == 3 and f < 15: fixed.append((2 + 4*f, It("s_add_u32 s60, s60, 4096", "s")))
        va = [It(f"v_add_f32 v{LS+qg}, v{LS+qg}, v{TS+qg}", "v", 2) for qg in range(2)]
        sched(A, mf_pv("n", P[0]), fixed, [sc, va], carry=CARRY128("n"), name=tag)
        crossrow(A, "v_add_f32", [LS, LS+1], [16, 17])
    q_addr()
    lastpv(lambda f: ar(Q + 4*f, 4), "lastq")
    A("s_branch AT_NORM")
    A("AT_LP:")
    lastpv(None, "lastp")
    A("AT_NORM:")
    stamp(A, 0, 9)
    for qg in range(2): A(f"v_rcp_f32 v{2+qg}, v{LS+qg}")
    A("s_nop 0")
    R = Rec()
    for qg in range(2):
        for T in range(8):
            for k in range(2):
                x = O + 4*(2*(2*T+k)+qg); d = CTX + 4*(8*qg+T) + 2*k
                for h_ in range(2):
                    R(f"v_pk_mul_f32 v[{x+2*h_}:{x+2*h_+1}], v[{x+2*h_}:{x+2*h_+1}], v[2:3] op_sel:[0,{qg}] op_sel_hi:[1,{qg}]")
                for h_ in range(2):
                    R(f"v_cvt_pk_bf16_f32 v{d+h_}, v{x+2*h_}, v{x+2*h_+1}")
    weave(A, R.L, slot_list(), 14)
    A(f"s_cmp_eq_u32 s{sMode}, 0")
    A("s_cbranch_scc1 AT_OPROJ")
    A(f"s_cmp_eq_u32 s{sMode}, 1")
    A("s_cbranch_scc1 AT_PUB")
    for r in range(64): A(f"v_accvgpr_write_b32 a{PARK+r}, v{CTX+r}")
    A(f"s_sub_u32 s{sBlk}, 15, s23")
    A(f"s_mov_b32 s{sN}, s{sNH}")
    A(f"s_mov_b32 s{sMode}, 1")
    A("s_waitcnt vmcnt(8)")
    A("s_branch AT_SEG")
    A("AT_PUB:")
    for qg in range(2): A(f"v_log_f32 v{28+qg}, v{LS+qg}")
    po_addr()
    for qg in range(2): A(f"v_sub_f32 v{28+qg}, v{28+qg}, v{NEGM+qg}")
    A(f"buffer_store_dwordx2 v[28:29], v2, s[12:15], s63 offen sc1")
    for f in range(16):
        A(f"buffer_store_dwordx4 {vr(CTX + 4*f, 4)}, v{vL16}, s[12:15], s60 offen offset:{(f % 4)*1024} sc1")
        if f % 4 == 3 and f < 15: A("s_add_u32 s60, s60, 4096")
        if f >= 2:
            for r in range(4): A(f"v_accvgpr_read_b32 v{CTX+4*(f-2)+r}, a{PARK+4*(f-2)+r}")
    A(f"s_mov_b32 s{sBlk}, s23")
    A("v_mov_b32 v2, 1")
    for r in range(8): A(f"v_accvgpr_read_b32 v{CTX+56+r}, a{PARK+56+r}")
    A("s_waitcnt vmcnt(0)")
    A(publish(67))
    A("s_branch AT_OPROJ")
    A("AT_LA:")
    po_addr()
    A(f"buffer_load_dwordx2 v[28:29], v2, s[12:15], s63 offen sc1")
    lastpv(lambda f: vr(CTX + 4*f, 4), "lasta")
    stamp(A, 0, 9)
    for qg in range(2): A(f"v_log_f32 v{2+qg}, v{LS+qg}")
    A("s_waitcnt vmcnt(8)")
    for qg in range(2):
        A(f"v_sub_f32 v{2+qg}, v{2+qg}, v{NEGM+qg}")
        A(f"v_sub_f32 v{2+qg}, v{2+qg}, v{28+qg}")
    for qg in range(2):
        A(f"v_exp_f32 v{28+qg}, v{2+qg}")
        A(f"v_exp_f32 v{2+qg}, -v{2+qg}")
    A("s_nop 0")
    for qg in range(2):
        A(f"v_add_f32 v{28+qg}, 1.0, v{28+qg}")
        A(f"v_add_f32 v{2+qg}, 1.0, v{2+qg}")
        A(f"v_mul_f32 v{2+qg}, v{2+qg}, v{LS+qg}")
    for qg in range(2):
        A(f"v_rcp_f32 v{28+qg}, v{28+qg}")
        A(f"v_rcp_f32 v{2+qg}, v{2+qg}")
    A("s_nop 0")
    n_ = 0
    sl = slot_list()
    for qg in range(2):
        if qg == 1: A("s_waitcnt vmcnt(8)")
        for T in range(8):
            for k in range(2):
                x = O + 4*(2*(2*T+k)+qg); d = CTX + 4*(8*qg+T) + 2*k
                t = TMP + 4*(n_ % 2); n_ += 1
                for h_ in range(2):
                    A(f"v_lshlrev_b32 v{t+2*h_}, 16, v{d+h_}")
                    A(f"v_and_b32 v{t+2*h_+1}, 0xffff0000, v{d+h_}")
                    A(f"v_pk_mul_f32 v[{x+2*h_}:{x+2*h_+1}], v[{x+2*h_}:{x+2*h_+1}], v[2:3] op_sel:[0,{qg}] op_sel_hi:[1,{qg}]")
                for h_ in range(2):
                    A(f"v_pk_fma_f32 v[{x+2*h_}:{x+2*h_+1}], v[{t+2*h_}:{t+2*h_+1}], v[28:29], v[{x+2*h_}:{x+2*h_+1}] op_sel:[0,{qg},0] op_sel_hi:[1,{qg},1]")
                for h_ in range(2):
                    A(f"v_cvt_pk_bf16_f32 v{d+h_}, v{x+2*h_}, v{x+2*h_+1}")
            if qg == 0: A(sl[T])
    A("AT_OPROJ:")
    stamp(A, 0, 10)
    A("v_lshrrev_b32 v2, 2, v1")
    A("v_bfe_u32 v3, v2, 1, 2")
    A("v_lshlrev_b32 v2, 7, v2")
    A("v_and_b32 v26, 3, v1")
    A("v_lshl_add_u32 v2, v26, 3, v2")
    A(f"v_add_u32 v2, s{sRR}, v2")
    for k in range(4):
        A(f"v_xor_b32 v26, {k}, v3")
        A(f"v_lshl_add_u32 v{ADO[k]}, v26, 5, v2")
    A(f"s_lshl_b32 s{sO0}, s{sBlk}, 3")
    A(f"s_add_u32 s{sO0}, s{sO0}, s20")
    A(f"s_lshl_b32 s{sO0}, s{sO0}, 4")
    A(f"s_add_u32 s{sO0}, s{sO0}, s21")
    A(f"s_mul_i32 s{sO0}, s{sO0}, 14336")
    A(f"s_add_u32 s{sO0}, s{sO0}, {WS_OP}")
    A(f"s_add_u32 s{sO1}, s{sO0}, {64*14336}")
    A("s_waitcnt vmcnt(16)")
    A("s_barrier")
    def rdo(rho):
        f, hh = rho // 2, rho % 2
        mt, T = f // 8, f % 8
        return f"ds_read_b64_tr_b16 {ar(RING + 4*(f % 16) + 2*hh, 2)}, v{ADO[mt]} offset:{T*4096 + hh*2048}"
    for rho in range(24): A(rdo(rho))
    mf = []; fixed = []; sc = []; va = []; vb = []
    n_ = 0
    busy = set(DG) | {1}
    def fit(gaps, lo):
        out = []; cnt = {}; gi = 0
        for l in lo:
            while gaps[gi] < l or cnt.get(gaps[gi], 0) >= 2: gi += 1
            out.append(gaps[gi]); cnt[gaps[gi]] = cnt.get(gaps[gi], 0) + 1
        return out
    SG = [11, 21, 47, 55]
    for ph in range(7):
        base = 64*ph
        ob = O + 32*(ph % 2)
        for mt in range(4):
            for qg in range(2):
                for T in range(8):
                    d = vr(ob + 4*(2*mt+qg), 4); f = 8*mt + T
                    mf.append((f"{MF} {d}, {ring(f)}, {vr(CTX + 4*(8*qg+T), 4)}, {'0' if T == 0 else d}", [(ph, 2*f), (ph, 2*f+1)]))
        dma = ph < 4
        stream_items(base, fixed, sc, dma=dma, mark=f"wo{ph+3}", delta=True, nocheck=True)
        war = lambda f: 16*((f-16)//8) + 8 + f % 8 if f >= 16 else 0
        og = [g for g in range(0, 40) if (g not in busy or not dma) and g not in SG]
        pos = spread(40, og)
        pos = fit(og, [max(pos[i], war((24+i)//2)) for i in range(40)])
        for i, g in enumerate(pos): fixed.append((base + g, It(rdo(24+i), "d", rid=(ph, 24+i))))
        if ph < 6:
            w = {0: "@wo_start+8", 1: "@wo_start+0"}.get(ph, f"@wo{ph+1}+0")
            fixed.append((base + 40, It(f"s_waitcnt vmcnt({w})", "s")))
            fixed.append((base + 41, It("s_barrier", "b")))
            tg = [g for g in range(42, 64) if g not in SG]
            tp = spread(24, tg)
            tp = fit(tg, [max(tp[i], war(32 + i//2)) for i in range(24)])
            for i, g in enumerate(tp): fixed.append((base + g, It(rdo(i), "d", rid=(ph+1, i))))
            los = [22, 22, max(pos[23], 22), pos[39]]
            his = [39, tp[16] - 1, 63, 63]
            for k in range(4): va.append(It(f"v_add_u32 v{ADO[k]}, s{sDel}, v{ADO[k]}", "v", base + los[k], hi=base + his[k]))
        for u in range(2):
            for qg in range(2):
                t = 40 + 4*(n_ % 4); n_ += 1
                for k in range(2):
                    x = ob + 4*(2*(2*u+k)+qg); lo = base + 16*(2*u+k) + 8*qg + 15
                    vb.append(It(f"v_cvt_pk_bf16_f32 v{t+2*k}, v{x}, v{x+1}", "v", lo))
                    vb.append(It(f"v_cvt_pk_bf16_f32 v{t+2*k+1}, v{x+2}, v{x+3}", "v", lo, hi=(lo + 100 if ph < 5 else None)))
                vb.append(It(f"buffer_store_dwordx4 v[{t}:{t+3}], v{vL16}, s[12:15], s{sO0+qg} offen offset:{(ph % 2)*2048 + u*1024} {OPT['st_op']}", "m", gapafter=1))
                if ph % 2 == 1 and u == 1: vb.append(It(f"s_add_u32 s{sO0+qg}, s{sO0+qg}, 4096", "s"))
    tailv = vb[-10:]; vb = vb[:-10]
    sched(A, mf, fixed, [sc, va, vb], carry=[((0, i), -30) for i in range(24)], name="oproj", reserve=[64*ph + g for ph in range(7) for g in SG])
    A("s_nop 7")
    for it in tailv: A(it.text)
    stamp(A, 0, 11)
    A("TL_BEGIN:")
    if OPT["fuse"]: gen_tail(A, poll, one, sBlk, weave)
    else: A("s_endpgm")
    for o, b in stubs:
        A(f"{o}:")
        A("s_call_b64 s[34:35], AT_NEXT")
        A(f"s_branch {b}")
    for o, b in sigstubs:
        A(f"{o}:")
        A("v_mov_b32 v2, 1")
        A("s_mov_b64 exec, 1")
        A("buffer_atomic_add v2, off, s[72:75], s65")
        A("s_mov_b64 exec, -1")
        A(f"s_branch {b}")
    A("MN_END:")
    kernel_end(A, name, 512, 256, nsgpr=102)

def build(kernels):
    A = Asm()
    launches = {
        "main": "; @launch kernel=main_kernel grid=(256,1,1) block=(256,1,1) lds=139264",
        "red": "; @launch kernel=redln_kernel grid=(256,1,1) block=(448,1,1) lds=9216",
        "m1": "; @launch kernel=mlp1_kernel grid=(224,1,1) block=(256,1,1) lds=131072",
        "m2": "; @launch kernel=mlp2_kernel grid=(224,1,1) block=(256,1,1) lds=131072",
    }
    gens = {"main": gen_main, "red": gen_red, "m1": lambda A: gen_mlp(A, False), "m2": lambda A: gen_mlp(A, True)}
    if OPT["fuse"]: launches["main"] = launches["main"].replace("139264", "163840")
    head = HEADER + "\n".join(launches[k] for k in kernels) + "\n"
    A('.amdgcn_target "amdgcn-amd-amdhsa--gfx950"')
    for k in kernels: gens[k](A)
    A(".text")
    A("ALL_END:")
    A("s_endpgm")
    return head + A.text()

if __name__ == "__main__":
    for a in sys.argv[2:]:
        k, v = a.split("=")
        OPT[k] = {"True": True, "False": False}.get(v, v)
    txt = build(OPT["kernels"].split(","))
    if OPT.get("final"):
        txt = txt.replace("; @launch kernel=main_kernel ", "; @launch ").replace("main_kernel", "sequential_preLN__compressed_kv_cla__mixer_token_mlp__prompt_kernel")
    open(sys.argv[1], "w").write(txt)
```
